```python
import torch

def _softmax(x, axis=-1):
    return torch.softmax(x, dim=axis)
def _gelu(x):
    return torch.nn.functional.gelu(x, approximate="tanh")
def _silu(x):
    return torch.nn.functional.silu(x)
def _sigmoid(x):
    return torch.sigmoid(x)
def _layernorm(x, axis=-1, eps=1e-5):
    m = x.mean(dim=axis, keepdim=True)
    v = x.var(dim=axis, keepdim=True, unbiased=False)
    return (x - m) / torch.sqrt(v + eps)
def _scatter_add(tgt, idx, src, axis=0):
    return tgt.clone().index_add_(axis, idx, src)
def _segment_sum(src, seg, n):
    out = torch.zeros((n,) + src.shape[1:], dtype=src.dtype)
    return out.index_add_(0, seg, src)
def _pad(x, pw):
    flat = tuple(v for pair in reversed(pw) for v in pair)
    return torch.nn.functional.pad(x, flat)

kernel_name = 'sequential_preLN__ssm_conv_s4d__mixer_s_mlp__prompt'

def setup_inputs():

    _w = (lambda a: (lambda t: t.to(torch.bfloat16) if t.is_floating_point() else t)(torch.as_tensor(a)))
    def _A_setup():
        Bsz, L, D, N = 1, 2048, 512, 128
        return {
            "u": _w((lambda *s: torch.randn(*s, dtype=torch.bfloat16) * 0.05)(Bsz, L, D)),
            "log_A_real": _w((lambda *s: torch.randn(*s, dtype=torch.bfloat16) * 6.4)(D, N) * 0.5),
            "A_imag": _w((lambda *s: torch.randn(*s, dtype=torch.bfloat16) * 0.05)(D, N) * 3.14),
            "C_real": _w((lambda *s: torch.randn(*s, dtype=torch.bfloat16) * 0.05)(D, N) / N ** 0.5),
            "C_imag": _w((lambda *s: torch.randn(*s, dtype=torch.bfloat16) * 0.05)(D, N) / N ** 0.5),
            "log_dt": _w((lambda *s: torch.randn(*s, dtype=torch.bfloat16) * 0.05)(D) * 0.5 - 4.0),
            "D_skip": _w((lambda *s: torch.randn(*s, dtype=torch.bfloat16) * 0.05)(D)),
        }
    _A_in = _A_setup()

    def _B_setup():
        B, S, D, F = 1, 2048, 512, 1792
        return {
            "x":  _w((lambda *s: torch.randn(*s, dtype=torch.bfloat16) * 0.05)(B, S, D)),
            "w1": _w((lambda *s: torch.randn(*s, dtype=torch.bfloat16) * 6.4)(D, D) * (D ** -0.5)),
            "w2": _w((lambda *s: torch.randn(*s, dtype=torch.bfloat16) * 6.4)(D, D) * (D ** -0.5)),
            "w3": _w((lambda *s: torch.randn(*s, dtype=torch.bfloat16) * 6.4)(D, F) * (D ** -0.5)),
            "w4": _w((lambda *s: torch.randn(*s, dtype=torch.bfloat16) * 6.4)(F, D) * (F ** -0.5)),
        }
    _B_in = _B_setup()

    return {
        "A_u": _A_in["u"],
        "A_log_A_real": _A_in["log_A_real"],
        "A_A_imag": _A_in["A_imag"],
        "A_C_real": _A_in["C_real"],
        "A_C_imag": _A_in["C_imag"],
        "A_log_dt": _A_in["log_dt"],
        "A_D_skip": _A_in["D_skip"],
        "B_x": _B_in["x"],
        "B_w1": _B_in["w1"],
        "B_w2": _B_in["w2"],
        "B_w3": _B_in["w3"],
        "B_w4": _B_in["w4"],
    }

def reference(A_u, A_log_A_real, A_A_imag, A_C_real, A_C_imag, A_log_dt, A_D_skip, B_x, B_w1, B_w2, B_w3, B_w4):
    def _A_ref(u, log_A_real, A_imag, C_real, C_imag, log_dt, D_skip):
        L = u.shape[1]
        dt = torch.exp(log_dt)
        A = -torch.exp(log_A_real) + 1j * A_imag
        C = (C_real + 1j * C_imag) * dt[:, None]
        pos = (lambda x, dt: x.to(dt))(torch.arange(L), log_dt.dtype)
        P = torch.exp((A * dt[:, None])[:, :, None] * pos[None, None, :])
        K = 2.0 * torch.einsum("dn,dnl->dl", C, P).real
        L2 = 2 * L
        u_t = (lambda x, *d: x.permute(*d))(u, 0, 2, 1)
        Kf = (lambda x, *a, **k: torch.fft.rfft(x.float(), *a, **k))(K, L2)
        Uf = (lambda x, *a, **k: torch.fft.rfft(x.float(), *a, **k))(u_t, L2)
        y = (lambda x, *a, **k: torch.fft.irfft(x, *a, **k).to(torch.bfloat16))(Uf * Kf[None, :, :], L2)[:, :, :L]
        y = (lambda x, *d: x.permute(*d))(y, 0, 2, 1)
        return y + u * D_skip[None, None, :]

    def _B_ref(x, w1, w2, w3, w4):
        B, S, D = x.shape
        h = _gelu(_layernorm(x, axis=-1) @ w1)
        c = D // 4
        g0 = _pad(h[:, :, 0*c:1*c], ((0, 0), (1, 0), (0, 0)))[:, :S, :]
        g1 = _pad(h[:, :, 1*c:2*c], ((0, 0), (0, 1), (0, 0)))[:, 1:, :]
        g2 = _pad(h[:, :, 2*c:3*c], ((0, 0), (2, 0), (0, 0)))[:, :S, :]
        g3 = _pad(h[:, :, 3*c:   ], ((0, 0), (0, 2), (0, 0)))[:, 2:, :]
        hs = torch.concatenate([g0, g1, g2, g3], axis=-1) @ w2
        x1 = x + hs
        h2 = _gelu(_layernorm(x1, axis=-1) @ w3) @ w4
        return x1 + h2

    x = A_u
    h = x + _A_ref(_layernorm(x, axis=-1), A_log_A_real, A_A_imag, A_C_real, A_C_imag, A_log_dt, A_D_skip)
    h2 = h + _B_ref(_layernorm(h, axis=-1), B_w1, B_w2, B_w3, B_w4)
    return h2
```

```python
NAME = "sequential_preLN__ssm_conv_s4d__mixer_s_mlp__prompt"
WS_UX   = 0x000000
WS_KR   = 0x400000
KP      = 4160
WS_SC   = 0x620000
WS_CS1  = 0x621000
WS_CS3  = 0x622000
WS_ST1  = 0x624000
WS_P3   = 0x630000
WS_HT   = 0x700000
WS_H    = 0x900000
WS_H1   = 0xB00000
WS_X1   = 0xD00000
WS_H3   = 0xF00000
WS_FLAG = 0x1600000
WS_END  = 0x1700000

class Asm:
    def __init__(self):
        self.l = []
        self.uid = 0
    def __call__(self, s):
        for x in s.strip("\n").split("\n"):
            self.l.append("  " + x.strip())
    def label(self, n):
        self.l.append(n + ":")
    def new(self, p="L"):
        self.uid += 1
        return "%s_%d" % (p, self.uid)
    def text(self):
        return "\n".join(self.l) + "\n"

def v(a, n=1):
    return "v%d" % a if n == 1 else "v[%d:%d]" % (a, a + n - 1)
def a_(a, n=1):
    return "a%d" % a if n == 1 else "a[%d:%d]" % (a, a + n - 1)
def s(a, n=1):
    return "s%d" % a if n == 1 else "s[%d:%d]" % (a, a + n - 1)

def kd(name, vgpr, agpr=0, sgpr=96):
    acc = (vgpr + 3) // 4 * 4
    return """.p2align 6
.amdhsa_kernel %s
  .amdhsa_next_free_vgpr %d
  .amdhsa_next_free_sgpr %d
  .amdhsa_accum_offset %d
  .amdhsa_group_segment_fixed_size 0
  .amdhsa_kernarg_size 120
  .amdhsa_user_sgpr_count 2
  .amdhsa_user_sgpr_kernarg_segment_ptr 1
  .amdhsa_system_sgpr_workgroup_id_x 1
.end_amdhsa_kernel
""" % (name, acc + agpr, sgpr, acc)

def srd(A, dst, ptr, size):
    A("s_mov_b32 s%d, s%d" % (dst, ptr))
    A("s_and_b32 s%d, s%d, 0xffff" % (dst + 1, ptr + 1))
    A("s_mov_b32 s%d, 0x%x" % (dst + 2, size))
    A("s_mov_b32 s%d, 0x20000" % (dst + 3))

def bf16r(A, d, x):
    A("v_cvt_pk_bf16_f32 v%d, v%d, v%d" % (d, x, x))
    A("v_and_b32 v%d, 0xffff0000, v%d" % (d, d))

def cmul(A, d, a, b, t):
    A("v_pk_mul_f32 %s, %s, %s op_sel:[0,0] op_sel_hi:[0,1]" % (v(t, 2), v(a, 2), v(b, 2)))
    A("v_pk_fma_f32 %s, %s, %s, %s op_sel:[1,1,0] op_sel_hi:[1,0,1] neg_lo:[0,1,0]" % (v(d, 2), v(a, 2), v(b, 2), v(t, 2)))

LOG2E = 1.4426950408889634
import struct
def f32(x):
    return "0x%08x" % struct.unpack("<I", struct.pack("<f", x))[0]
```

```python
from g_base import *
from g_k1 import rowstats
K1C = 2.0 * 0.7978845608028654 * LOG2E
K2C = K1C * 0.044715

class VM:
    def __init__(self): self.n = 0
    def add(self, k=1): self.n += k; return self.n
    def wait(self, A, idx): A("s_waitcnt vmcnt(%d)" % min(63, self.n - idx))

def gelu8(A, acc0, acc1, cs, nmu, P1, R, T, out):
    src = [acc0, acc0 + 2, acc1, acc1 + 2]
    for i in range(4):
        A("v_pk_fma_f32 %s, %s, %s, %s op_sel_hi:[1,0,1]" % (v(src[i], 2), v(cs + 2 * i, 2), v(nmu, 2), v(src[i], 2)))
    for i in range(4):
        A("v_pk_mul_f32 %s, %s, %s" % (v(T + 2 * i, 2), v(src[i], 2), v(src[i], 2)))
    for i in range(4):
        A("v_pk_fma_f32 %s, %s, %s, %s op_sel:[0,1,0] op_sel_hi:[1,1,0]" % (v(T + 2 * i, 2), v(T + 2 * i, 2), v(P1, 2), v(P1, 2)))
    for i in range(4):
        A("v_pk_mul_f32 %s, %s, %s" % (v(T + 2 * i, 2), v(T + 2 * i, 2), v(src[i], 2)))
    for i in range(8): A("v_exp_f32 v%d, v%d" % (T + i, T + i))
    for i in range(4):
        A("v_pk_fma_f32 %s, %s, %s, %s op_sel_hi:[1,0,0]" % (v(T + 2 * i, 2), v(T + 2 * i, 2), v(R, 2), v(R, 2)))
    for i in range(8): A("v_rcp_f32 v%d, v%d" % (T + i, T + i))
    for i in range(4):
        A("v_pk_mul_f32 %s, %s, %s" % (v(T + 2 * i, 2), v(T + 2 * i, 2), v(src[i], 2)))
    for i in range(4):
        A("v_cvt_pk_bf16_f32 v%d, v%d, v%d" % (out + i, T + 2 * i, T + 2 * i + 1))

def gelu_consts(A, rho, P1, R):
    A("v_mul_f32 v%d, %s, v%d" % (P1, f32(-K1C), rho))
    A("v_mul_f32 v%d, v%d, v%d" % (P1 + 1, rho, rho))
    A("v_rcp_f32 v%d, v%d" % (R, rho))
    A("v_mul_f32 v%d, v%d, v%d" % (P1 + 1, P1 + 1, rho))
    A("v_mul_f32 v%d, %s, v%d" % (P1 + 1, f32(-K2C), P1 + 1))

def gen_gemm(A, which, P=6):
    cfg = {1: dict(T=64, K=512, wptr=64, wsz=0x80000, PA=1024, btr=1, BB=WS_HT, C=512),
           2: dict(T=64, K=512, wptr=72, wsz=0x80000, PA=1024, btr=0, BB=WS_H1, C=512),
           3: dict(T=128, K=512, wptr=80, wsz=0x1c0000, PA=3584, btr=0, BB=WS_X1, C=512),
           4: dict(T=64, K=1792, wptr=88, wsz=0x1c0000, PA=1024, btr=0, BB=WS_H3, C=1792)}[which]
    T, K, PA, btr, BB, C = cfg["T"], cfg["K"], cfg["PA"], cfg["btr"], cfg["BB"], cfg["C"]
    big = T == 128
    F = T // 32
    KS = 32 if big else 64
    SPS = KS // 32
    S = K // KS
    NSLOT = 8
    nm = "g%d" % which
    END = "L_%s_end" % nm
    A.l.append(".p2align 8"); A.label(nm + "_kernel")
    vm = VM()
    vDA, vDB = 2, 3
    nAb = F // 2; nBb = 2 if btr else 1
    vRA = 8; vRB = vRA + 2 * nAb
    FA = 16; FB = FA + 2 * F * 4; ACC = FB + 2 * F * 4; X = ACC + F * F * 4
    A("""s_cmp_ge_u32 s2, 256
    s_cbranch_scc1 %s
    s_load_dwordx2 s[6:7], s[0:1], 112
    s_load_dwordx2 s[4:5], s[0:1], %d
    s_load_dwordx2 s[36:37], s[0:1], 96
    s_and_b32 s16, s2, 7
    s_lshr_b32 s17, s2, 3
    v_lshrrev_b32 v1, 6, v0
    v_and_b32 v0, 63, v0
    v_readfirstlane_b32 s18, v1""" % (END, cfg["wptr"]))
    if big:
        A("""s_cmp_ge_u32 s17, 28
        s_cbranch_scc1 %s
        s_cmp_ge_u32 s17, 14
        s_cselect_b32 s19, 1, 0
        s_cselect_b32 s20, 14, 0
        s_sub_u32 s20, s17, s20
        s_lshl_b32 s16, s16, 1
        s_add_u32 s19, s19, s16""" % END)
    else:
        A("""s_lshr_b32 s19, s17, 3
        s_and_b32 s20, s17, 7
        s_lshl_b32 s16, s16, 2
        s_add_u32 s19, s19, s16""")
    A("""s_and_b32 s21, s18, 1
    s_lshr_b32 s22, s18, 1
    v_lshrrev_b32 v4, 3, v0
    v_and_b32 v5, 7, v0
    v_bfe_u32 v6, v0, 4, 1
    v_lshlrev_b32 v7, 2, v6
    v_xor_b32 v7, v7, v5
    v_mul_u32_u24 v%d, %d, v4
    v_lshl_add_u32 v%d, v7, 4, v%d
    s_mul_i32 s23, s18, %d
    s_lshl_b32 s24, s20, %d
    s_add_u32 s23, s23, s24""" % (vDA, PA, vDA, vDA, 8 * PA, 8 if big else 7))
    if btr:
        A("""v_lshlrev_b32 v7, 1, v6
        s_lshl_b32 s24, s21, 2
        v_xor_b32 v7, v7, v5
        v_xor_b32 v7, s24, v7
        v_lshlrev_b32 v%d, 12, v4
        v_lshl_add_u32 v%d, v7, 4, v%d
        s_lshl_b32 s25, s18, 15
        s_lshl_b32 s24, s19, 7
        s_add_u32 s25, s25, s24
        s_add_u32 s25, s25, %d""" % (vDB, vDB, vDB, BB))
        B2, BST = 32 * 4096, 64 * 4096
    else:
        A("""v_lshlrev_b32 v%d, 4, v0
        s_lshl_b32 s24, s19, %d
        s_add_u32 s24, s24, s18
        s_mul_i32 s25, s24, %d
        s_add_u32 s25, s25, %d""" % (vDB, 3 if big else 2, 32 * C, BB))
        B2, BST = (4 * 32 * C, 1024) if big else (1024, 2048)
    A2, AST = (128, 32 * PA) if big else (32 * PA, 64 * PA)
    A("s_lshl_b32 s26, s18, 10\ns_waitcnt lgkmcnt(0)")
    srd(A, 8, 4, cfg["wsz"]); srd(A, 12, 6, WS_END)
    stage_last = {}
    def dma(st):
        base = (st % NSLOT) * 16384
        A("s_add_u32 m0, s26, %d\ns_add_u32 s27, s23, %d" % (base, A2))
        A("buffer_load_dwordx4 v%d, s[8:11], s23 offen lds" % vDA)
        A("s_add_u32 m0, s26, %d\ns_add_u32 s23, s23, %d" % (base + 4096, AST))
        A("buffer_load_dwordx4 v%d, s[8:11], s27 offen lds" % vDA)
        A("s_add_u32 m0, s26, %d\ns_add_u32 s27, s25, %d" % (base + 8192, B2))
        A("buffer_load_dwordx4 v%d, s[12:15], s25 offen lds" % vDB)
        A("s_add_u32 m0, s26, %d\ns_add_u32 s25, s25, %d" % (base + 12288, BST))
        A("buffer_load_dwordx4 v%d, s[12:15], s27 offen lds" % vDB)
        stage_last[st] = vm.add(4)
    nxt = 0
    dma(0); dma(1); nxt = 2
    A("""v_lshrrev_b32 v4, 4, v0
    v_bfe_u32 v5, v0, 2, 2
    v_and_b32 v6, 3, v0
    v_lshlrev_b32 v7, 10, v4
    v_lshl_add_u32 v7, v5, 7, v7
    v_bfe_u32 v1, v0, 3, 1""")
    if big:
        A("""v_lshl_add_u32 v%d, v6, 4, v7
        s_lshl_b32 s24, s21, 12
        v_lshl_add_u32 v%d, v1, 6, v%d
        v_add_u32 v%d, s24, v%d
        v_xor_b32 v%d, 64, v%d""" % (vRA, vRA, vRA, vRA, vRA, vRA + 1, vRA))
    else:
        A("""v_xor_b32 v%d, s21, v1
        v_lshl_add_u32 v%d, v%d, 6, v7
        v_lshl_add_u32 v%d, v6, 4, v%d""" % (vRA, vRA, vRA, vRA, vRA))
    if btr:
        A("""v_and_b32 v%d, 1, v4
        v_xor_b32 v%d, s22, v%d
        v_lshl_add_u32 v%d, v%d, 1, v1
        v_lshl_add_u32 v%d, v%d, 5, v7
        v_lshl_add_u32 v%d, v6, 3, v%d
        v_add_u32 v%d, 8192, v%d
        v_xor_b32 v%d, 32, v%d""" % ((vRB,) * 11 + (vRB + 1, vRB)))
    else:
        A("""s_mul_i32 s24, s22, %d
        s_add_u32 s24, s24, 8192
        v_lshl_add_u32 v%d, v0, 4, s24""" % (1024 * F, vRB))
    for i in range(nAb): A("v_add_u32 v%d, 0x10000, v%d" % (vRA + nAb + i, vRA + i))
    for i in range(nBb): A("v_add_u32 v%d, 0x10000, v%d" % (vRB + nBb + i, vRB + i))
    while nxt < min(P, S): dma(nxt); nxt += 1
    A("""s_mul_i32 s29, s19, %d
    s_mul_i32 s24, s22, %d
    s_add_u32 s29, s29, s24
    s_lshr_b32 s28, s29, 4
    s_mul_i32 s30, s20, %d
    s_mul_i32 s24, s21, %d
    s_add_u32 s30, s30, s24""" % (T, T // 2, T // 32, T // 64))
    ep = {}
    A("v_lshlrev_b32 v5, 4, v0\nv_lshlrev_b32 v6, 5, v4\nv_and_b32 v7, 15, v0")
    if which in (1, 3):
        CS = X; X += 8 * nAb
        A("s_lshl_b32 s24, s30, 7\ns_add_u32 s24, s24, %d" % (WS_CS1 if which == 1 else WS_CS3))
        for p in range(nAb):
            A("buffer_load_dwordx4 %s, v6, s[12:15], s24 offen offset:%d" % (v(CS + 8 * p, 4), 128 * p))
            A("buffer_load_dwordx4 %s, v6, s[12:15], s24 offen offset:%d" % (v(CS + 8 * p + 4, 4), 128 * p + 16))
        ep["cs"] = vm.add(2 * nAb)
    A("s_lshl_b32 s31, s28, 14\ns_lshl_b32 s24, s30, 10\ns_add_u32 s31, s31, s24")
    if which in (2, 4):
        HR = X; X += 8
        A("s_add_u32 s24, s31, %d\ns_add_u32 s27, s31, %d" % (WS_H, WS_H + 16384))
        A("buffer_load_dwordx4 %s, v5, s[12:15], s24 offen" % v(HR, 4))
        A("buffer_load_dwordx4 %s, v5, s[12:15], s27 offen" % v(HR + 4, 4))
        vm.add(2)
        X1R = X; X += 8
        if which == 2:
            A("v_lshlrev_b32 v1, 3, v7\ns_lshl_b32 s24, s29, 3\ns_add_u32 s24, s24, %d" % WS_ST1)
            A("buffer_load_dwordx2 %s, v1, s[12:15], s24 offen" % v(X1R, 2))
            A("buffer_load_dwordx2 %s, v1, s[12:15], s24 offen offset:128" % v(X1R + 2, 2))
        else:
            A("s_add_u32 s24, s31, %d\ns_add_u32 s27, s31, %d" % (WS_X1, WS_X1 + 16384))
            A("buffer_load_dwordx4 %s, v5, s[12:15], s24 offen" % v(X1R, 4))
            A("buffer_load_dwordx4 %s, v5, s[12:15], s27 offen" % v(X1R + 4, 4))
        ep["res"] = vm.add(2)
    if which == 3:
        PS = X; X += 8 * F + 8
        A("v_lshlrev_b32 v1, 16, v4\nv_lshl_add_u32 v1, v7, 2, v1\ns_lshl_b32 s24, s29, 2\ns_add_u32 s24, s24, %d" % WS_P3)
        for j in range(8):
            for fn in range(F):
                A("buffer_load_dword v%d, v1, s[12:15], s24 offen offset:%d" % (PS + 8 * fn + j, 64 * fn))
            if j < 7: A("s_add_u32 s24, s24, 8192")
        ep["ps"] = vm.add(8 * F)
    if which == 1:
        ONE = X; X += 4; SA = X; X += 8; GA = X; X += 8
        for i in range(4): A("v_mov_b32 v%d, 0x3f803f80" % (ONE + i))
    nsteps = K // 32
    def reads(t):
        st, ks = t // SPS, t % SPS
        base = (st % NSLOT) * 16384
        rg = base >> 16; base &= 0xffff
        b = t & 1
        L = []
        la = []; lb = []
        for fn in range(F):
            d = FB + (b * F + fn) * 4
            if btr:
                for hh in range(2): lb.append("ds_read_b64_tr_b16 %s, v%d offset:%d" % (v(d + 2 * hh, 2), vRB + rg * nBb + fn, base + 4096 * ks + 512 * hh))
            else:
                lb.append("ds_read_b128 %s, v%d offset:%d" % (v(d, 4), vRB + rg, base + 4096 * ks + 1024 * fn))
        for fm in range(F):
            d = FA + (b * F + fm) * 4
            for hh in range(2): la.append("ds_read_b64_tr_b16 %s, v%d offset:%d" % (v(d + 2 * hh, 2), vRA + rg * nAb + (fm >> 1), base + 4096 * ks + 512 * hh + 8 * (fm & 1)))
        return lb + la
    def mfmas(t):
        b = t & 1
        M = []
        for fm in range(F):
            for fn in range(F):
                c = ACC + (fm * F + fn) * 4
                M.append("v_mfma_f32_16x16x32_bf16 %s, %s, %s, %s" % (v(c, 4), v(FA + (b * F + fm) * 4, 4), v(FB + (b * F + fn) * 4, 4), "0" if t == 0 else v(c, 4)))
        if which == 1:
            E = []
            for fn in range(F):
                fb = v(FB + (b * F + fn) * 4, 4)
                E.append("v_mfma_f32_16x16x32_bf16 %s, %s, %s, %s" % (v(SA + 4 * fn, 4), v(ONE, 4), fb, "0" if t == 0 else v(SA + 4 * fn, 4)))
                E.append("v_mfma_f32_16x16x32_bf16 %s, %s, %s, %s" % (v(GA + 4 * fn, 4), fb, fb, "0" if t == 0 else v(GA + 4 * fn, 4)))
            M = E + M
        return M
    vm.wait(A, stage_last[0]); A("s_barrier")
    for r in reads(0): A(r)
    for t in range(nsteps):
        st = t // SPS
        newstage = (t + 1 < nsteps) and ((t + 1) % SPS == 0)
        if newstage:
            vm.wait(A, stage_last[st + 1]); A("s_barrier")
        R = reads(t + 1) if t + 1 < nsteps else []
        M = mfmas(t)
        A("s_waitcnt lgkmcnt(0)")
        per = -(-len(R) // max(1, len(M) - 1)) if R else 0
        dodma = newstage and nxt < S and (nxt < NSLOT or nxt - NSLOT <= st - 1)
        for i, m in enumerate(M):
            for r in R[i * per:(i + 1) * per]: A(r)
            A(m)
            if i == 1 and dodma: dma(nxt); nxt += 1
    assert nxt == S, (nxt, S)
    Tm = FA
    A("s_waitcnt vmcnt(0)")
    if which == 1:
        A("""s_lshr_b32 s24, s30, 1
        s_lshl_b32 s24, s24, 14
        s_and_b32 s27, s30, 1
        s_lshl_b32 s27, s27, 12
        s_add_u32 s24, s24, s27
        v_add_u32 v%d, s24, v%d
        v_add_u32 v%d, s24, v%d""" % (vRB, vRB, vRB + 1, vRB + 1))
        HF = FB
        for fn in range(2):
            for hh in range(2): A("ds_read_b64_tr_b16 %s, v%d offset:%d" % (v(HF + 4 * fn + 2 * hh, 2), vRB + fn, 512 * hh))
        A("""v_and_b32 v1, 3, v0
        v_lshrrev_b32 v2, 2, v7
        v_cmp_eq_u32 s[40:41], 1, v1
        v_cmp_eq_u32 s[42:43], 2, v1
        v_cmp_eq_u32 s[44:45], 3, v1
        v_cmp_eq_u32 s[46:47], v2, v4
        s_mov_b32 s90, %s""" % f32(1.0 / 512))
        for fn in range(2):
            g = GA + 4 * fn
            A("v_cndmask_b32 v%d, v%d, v%d, s[40:41]" % (g, g, g + 1))
            A("v_cndmask_b32 v%d, v%d, v%d, s[42:43]" % (g, g, g + 2))
            A("v_cndmask_b32 v%d, v%d, v%d, s[44:45]" % (g, g, g + 3))
            A("v_cndmask_b32 v%d, 0, v%d, s[46:47]" % (g, g))
            A("v_mov_b32 v%d, v%d" % (g + 1, g))
        for fn in range(2): A("v_permlane32_swap_b32 v%d, v%d" % (GA + 4 * fn, GA + 4 * fn + 1))
        for fn in range(2):
            g = GA + 4 * fn
            A("v_add_f32 v%d, v%d, v%d\nv_mov_b32 v%d, v%d" % (g, g, g + 1, g + 1, g))
        for fn in range(2): A("v_permlane16_swap_b32 v%d, v%d" % (GA + 4 * fn, GA + 4 * fn + 1))
        A("s_add_u32 s24, s31, %d\ns_add_u32 s27, s31, %d\ns_waitcnt lgkmcnt(0)" % (WS_H, WS_H + 16384))
        A("buffer_store_dwordx4 %s, v5, s[12:15], s24 offen" % v(HF, 4))
        A("buffer_store_dwordx4 %s, v5, s[12:15], s27 offen" % v(HF + 4, 4))
        A("""s_lshr_b32 s24, s30, 2
        s_lshr_b32 s27, s24, 1
        s_add_u32 s27, s27, 1
        s_sub_u32 s32, 0, s27
        s_bitcmp1_b32 s24, 0
        s_cselect_b32 s27, s32, s27
        s_add_u32 s27, s27, s29
        s_lshl_b32 s33, s30, 10
        s_add_u32 s33, s33, %d
        v_lshlrev_b32 v3, 3, v7
        s_lshl_b32 s34, s29, 3
        s_add_u32 s34, s34, %d""" % (WS_H1, WS_ST1))
        for fn in range(2):
            g = GA + 4 * fn; sa = SA + 4 * fn
            A("v_add_f32 v%d, v%d, v%d" % (g, g, g + 1))
            rowstats(A, sa, g, 512, g + 1, sa + 2, sa + 3)
            A("buffer_store_dwordx2 %s, v3, s[12:15], s34 offen offset:%d" % (v(sa + 2, 2), 128 * fn))
            A("v_sub_f32 v%d, v%d, v%d" % (sa, sa, sa + 2))
            A("v_mul_f32 v%d, v%d, v%d" % (g, g, sa + 3))
            A("v_mul_f32 v%d, v%d, v%d" % (sa, sa, sa + 3))
            A("v_mul_f32 v%d, v%d, v%d" % (g, g, sa + 3))
            bf16r(A, sa, sa)
            bf16r(A, g, g)
            A("v_add_f32 v%d, %s, v%d" % (g, f32(1e-5), g))
            A("v_fma_f32 v%d, -v%d, v%d, -v%d" % (sa, sa, g + 1, sa + 2))
            bf16r(A, g, g)
            A("v_sqrt_f32 v%d, v%d" % (g, g))
            bf16r(A, g, g)
            A("v_rcp_f32 v%d, v%d" % (g + 1, g))
            A("v_mul_f32 v%d, v%d, v%d" % (g + 1, g + 1, sa + 3))
            gelu_consts(A, g + 1, g + 2, g)
            gelu8(A, ACC + 4 * fn, ACC + 8 + 4 * fn, CS, sa, g + 2, g, Tm, Tm + 8 + 4 * fn)
            o = Tm + 8 + 4 * fn
            A("""v_add_u32 v1, s27, v7
            v_add_u32 v1, %d, v1
            v_cmp_gt_u32 vcc, 2048, v1
            v_and_b32 v1, 2047, v1
            v_lshrrev_b32 v2, 4, v1
            v_and_b32 v1, 15, v1
            v_lshlrev_b32 v2, 14, v2
            v_lshl_add_u32 v2, v1, 4, v2
            v_lshl_add_u32 v2, v4, 8, v2""" % (16 * fn))
            for i in range(4): A("v_cndmask_b32 v%d, 0, v%d, vcc" % (o + i, o + i))
            A("buffer_store_dwordx4 %s, v2, s[12:15], s33 offen" % v(o, 4))
    elif which == 2:
        A("s_add_u32 s24, s31, %d\ns_add_u32 s27, s31, %d" % (WS_X1, WS_X1 + 16384))
        for fn in range(2):
            mu = X1R + 2 * fn
            A("v_mul_f32 v%d, -v%d, v%d" % (mu, mu, mu + 1))
            src = [ACC + 4 * fn, ACC + 4 * fn + 2, ACC + 8 + 4 * fn, ACC + 8 + 4 * fn + 2]
            for i in range(4):
                h = HR + 4 * fn + i; t = Tm + 2 * i
                A("v_lshlrev_b32 v%d, 16, v%d\nv_and_b32 v%d, 0xffff0000, v%d" % (t, h, t + 1, h))
                A("v_pk_fma_f32 %s, %s, %s, %s op_sel:[0,1,0] op_sel_hi:[1,1,0]" % (v(t, 2), v(t, 2), v(mu, 2), v(mu, 2)))
                A("v_pk_add_f32 %s, %s, %s" % (v(t, 2), v(t, 2), v(src[i], 2)))
                A("v_cvt_pk_bf16_f32 v%d, v%d, v%d" % (h, t, t + 1))
            A("buffer_store_dwordx4 %s, v5, s[12:15], %s offen" % (v(HR + 4 * fn, 4), "s24" if fn == 0 else "s27"))
            sm = Tm + 8 + 4 * fn
            A("v_pk_add_f32 %s, %s, %s" % (v(sm, 2), v(Tm, 2), v(Tm + 2, 2)))
            A("v_pk_mul_f32 %s, %s, %s" % (v(sm + 2, 2), v(Tm, 2), v(Tm, 2)))
            A("v_pk_add_f32 %s, %s, %s" % (v(sm, 2), v(sm, 2), v(Tm + 4, 2)))
            A("v_pk_fma_f32 %s, %s, %s, %s" % (v(sm + 2, 2), v(Tm + 2, 2), v(Tm + 2, 2), v(sm + 2, 2)))
            A("v_pk_add_f32 %s, %s, %s" % (v(sm, 2), v(sm, 2), v(Tm + 6, 2)))
            A("v_pk_fma_f32 %s, %s, %s, %s" % (v(sm + 2, 2), v(Tm + 4, 2), v(Tm + 4, 2), v(sm + 2, 2)))
            A("v_add_f32 v%d, v%d, v%d" % (sm, sm, sm + 1))
            A("v_pk_fma_f32 %s, %s, %s, %s" % (v(sm + 2, 2), v(Tm + 6, 2), v(Tm + 6, 2), v(sm + 2, 2)))
            A("v_add_f32 v%d, v%d, v%d" % (sm + 2, sm + 2, sm + 3))
        s0, s1 = Tm + 8, Tm + 12
        A("v_permlane32_swap_b32 v%d, v%d\nv_permlane32_swap_b32 v%d, v%d" % (s0, s0 + 2, s1, s1 + 2))
        A("v_add_f32 v%d, v%d, v%d\nv_add_f32 v%d, v%d, v%d" % (s0, s0, s0 + 2, s1, s1, s1 + 2))
        A("v_permlane16_swap_b32 v%d, v%d" % (s0, s1))
        A("""v_add_f32 v%d, v%d, v%d
        v_and_b32 v1, 31, v0
        v_lshlrev_b32 v1, 2, v1
        v_lshrrev_b32 v2, 5, v0
        v_lshl_add_u32 v1, v2, 13, v1
        s_lshl_b32 s24, s30, 14
        s_lshl_b32 s27, s29, 2
        s_add_u32 s24, s24, s27
        s_add_u32 s24, s24, %d
        buffer_store_dword v%d, v1, s[12:15], s24 offen""" % (s0, s0, s1, WS_P3, s0))
    elif which == 3:
        A("s_mov_b32 s90, %s" % f32(1.0 / 512))
        A("s_mul_i32 s24, s28, %d\ns_lshl_b32 s27, s30, 10\ns_add_u32 s24, s24, s27\ns_add_u32 s24, s24, %d" % (32 * 1792, WS_H3))
        for fn in range(F):
            p = PS + 8 * fn
            A("v_pk_add_f32 %s, %s, %s" % (v(p, 2), v(p, 2), v(p + 2, 2)))
            A("v_pk_add_f32 %s, %s, %s" % (v(p + 4, 2), v(p + 4, 2), v(p + 6, 2)))
            A("v_pk_add_f32 %s, %s, %s" % (v(p, 2), v(p, 2), v(p + 4, 2)))
            A("v_mov_b32 v%d, v%d\nv_mov_b32 v%d, v%d" % (p + 2, p, p + 3, p + 1))
        for fn in range(F):
            p = PS + 8 * fn
            A("v_permlane32_swap_b32 v%d, v%d\nv_permlane32_swap_b32 v%d, v%d" % (p, p + 2, p + 1, p + 3))
        for fn in range(F):
            p = PS + 8 * fn
            A("v_pk_add_f32 %s, %s, %s" % (v(p, 2), v(p, 2), v(p + 2, 2)))
            A("v_mov_b32 v%d, v%d\nv_mov_b32 v%d, v%d" % (p + 2, p, p + 3, p + 1))
        for fn in range(F):
            p = PS + 8 * fn
            A("v_permlane16_swap_b32 v%d, v%d\nv_permlane16_swap_b32 v%d, v%d" % (p, p + 2, p + 1, p + 3))
        for fn in range(F):
            p = PS + 8 * fn
            A("v_pk_add_f32 %s, %s, %s" % (v(p, 2), v(p, 2), v(p + 2, 2)))
            rowstats(A, p, p + 1, 512, p + 2, p + 4, p + 3)
            A("v_mul_f32 v%d, -1.0, v%d" % (p + 4, p + 4))
            gelu_consts(A, p + 3, p + 6, p)
        for fn in range(F):
            p = PS + 8 * fn
            for pr in range(nAb):
                o = Tm + 8 + 4 * ((fn * nAb + pr) & 1)
                gelu8(A, ACC + ((2 * pr) * F + fn) * 4, ACC + ((2 * pr + 1) * F + fn) * 4, CS + 8 * pr, p + 4, p + 6, p, Tm, o)
                A("buffer_store_dwordx4 %s, v5, s[12:15], s24 offen offset:%d" % (v(o, 4), 1024 * pr))
            if fn < F - 1: A("s_add_u32 s24, s24, %d" % (32 * 1792))
    else:
        srd(A, 8, 36, 0x200000)
        A("""v_lshlrev_b32 v1, 10, v7
        v_lshl_add_u32 v1, v4, 4, v1
        s_lshl_b32 s24, s29, 10
        s_lshl_b32 s27, s30, 6
        s_add_u32 s24, s24, s27
        s_add_u32 s27, s24, 16384""")
        for fn in range(2):
            src = [ACC + 4 * fn, ACC + 4 * fn + 2, ACC + 8 + 4 * fn, ACC + 8 + 4 * fn + 2]
            for i in range(4):
                h = HR + 4 * fn + i; x = X1R + 4 * fn + i; t = Tm + 4 * i
                A("v_lshlrev_b32 v%d, 16, v%d\nv_and_b32 v%d, 0xffff0000, v%d" % (t, h, t + 1, h))
                A("v_lshlrev_b32 v%d, 16, v%d\nv_and_b32 v%d, 0xffff0000, v%d" % (t + 2, x, t + 3, x))
                A("v_pk_add_f32 %s, %s, %s" % (v(t, 2), v(t, 2), v(src[i], 2)))
                A("v_pk_add_f32 %s, %s, %s" % (v(t, 2), v(t, 2), v(t + 2, 2)))
                A("v_cvt_pk_bf16_f32 v%d, v%d, v%d" % (h, t, t + 1))
            A("buffer_store_dwordx4 %s, v1, s[8:11], %s offen" % (v(HR + 4 * fn, 4), "s24" if fn == 0 else "s27"))
    A.label(END)
    A("s_endpgm")
    return (nm + "_kernel", 256, 256, NSLOT * 16384, X, 0)
```

```python
from g_base import *
K1_NCS, K1_NLN, K1_NKG = 36, 128, 256
K1_GRID = K1_NCS + K1_NLN + K1_NKG
K1_LDS = 2 * 33280

def rowstats(A, sm, sq, n, tmp, mu, rinv):
    A("v_mul_f32 v%d, %s, v%d" % (sm, f32(1.0 / n), sm))
    A("v_mul_f32 v%d, v%d, v%d" % (tmp, sm, sm))
    A("v_fma_f32 v%d, v%d, %s, -v%d" % (sq, sq, "s90", tmp))
    A("v_max_f32 v%d, 0, v%d" % (sq, sq))
    bf16r(A, mu, sm)
    bf16r(A, tmp, sq)
    A("v_add_f32 v%d, %s, v%d" % (tmp, f32(1e-5), tmp))
    bf16r(A, tmp, tmp)
    A("v_sqrt_f32 v%d, v%d" % (tmp, tmp))
    A("s_nop 0")
    bf16r(A, tmp, tmp)
    A("v_rcp_f32 v%d, v%d" % (rinv, tmp))
    A("s_nop 0")

def gen_ln1(A):
    P = 1056; UO = 16 * P
    A("""v_lshrrev_b32 v1, 4, v0
    v_and_b32 v2, 15, v0
    s_lshl_b32 s4, s3, 14
    v_lshlrev_b32 v3, 10, v1
    v_lshl_add_u32 v3, v2, 4, v3""")
    for j in range(4):
        A("buffer_load_dwordx4 %s, v3, s[8:11], s4 offen offset:%d" % (v(8 + 4 * j, 4), 256 * j))
    A("""s_mov_b32 s20, 0x3f803f80
    s_mov_b32 s90, %s
    v_mul_u32_u24 v4, %d, v1
    v_lshl_add_u32 v4, v2, 4, v4
    v_mov_b32 v24, 0
    v_mov_b32 v25, 0
    v_mov_b32 v26, 0
    v_mov_b32 v27, 0""" % (f32(1.0 / 512), P))
    A("""v_and_b32 v28, 63, v0
    v_lshrrev_b32 v29, 6, v0
    v_bfe_u32 v30, v28, 2, 2
    v_bfe_u32 v31, v28, 4, 1
    v_lshl_add_u32 v30, v31, 3, v30
    v_mul_u32_u24 v5, %d, v30
    v_and_b32 v30, 3, v28
    v_lshl_add_u32 v5, v30, 3, v5
    v_lshrrev_b32 v30, 5, v28
    v_lshl_add_u32 v5, v30, 5, v5
    v_lshl_add_u32 v5, v29, 8, v5
    v_and_b32 v6, 15, v28
    v_lshl_add_u32 v6, v30, 4, v6
    v_lshl_add_u32 v6, v29, 7, v6
    v_lshlrev_b32 v6, 6, v6
    v_lshl_add_u32 v6, v31, 4, v6
    s_lshl_b32 s5, s3, 15""" % P)
    for j in range(4):
        A("s_waitcnt vmcnt(%d)" % (3 - j))
        A("ds_write_b128 v4, %s offset:%d" % (v(8 + 4 * j, 4), 256 * j))
        for e in range(4):
            r = 8 + 4 * j + e
            A("v_dot2_f32_bf16 v%d, v%d, s20, v%d" % (24 + (e & 1), r, 24 + (e & 1)))
            A("v_dot2_f32_bf16 v%d, v%d, v%d, v%d" % (26 + (e & 1), r, r, 26 + (e & 1)))
    A("s_nop 3\nv_add_f32 v24, v24, v25\nv_add_f32 v26, v26, v27")
    for sh in (8, 4, 2, 1):
        A("s_nop 1")
        A("v_add_f32_dpp v24, v24, v24 row_ror:%d row_mask:0xf bank_mask:0xf" % sh)
        A("v_add_f32_dpp v26, v26, v26 row_ror:%d row_mask:0xf bank_mask:0xf" % sh)
    rowstats(A, 24, 26, 512, 25, 27, 32)
    A("v_mov_b32 v33, v32\nv_mul_f32 v34, -v27, v32\nv_mov_b32 v35, v34")
    for j in range(4):
        for e in range(4):
            r = 8 + 4 * j + e
            t = 36 + 2 * (e & 1)
            A("v_lshlrev_b32 v%d, 16, v%d" % (t, r))
            A("v_and_b32 v%d, 0xffff0000, v%d" % (t + 1, r))
            A("v_pk_fma_f32 %s, %s, v[32:33], v[34:35]" % (v(t, 2), v(t, 2)))
            A("v_cvt_pk_f16_f32 v%d, v%d, v%d" % (r, t, t + 1))
        A("ds_write_b128 v4, %s offset:%d" % (v(8 + 4 * j, 4), UO + 256 * j))
    A("s_waitcnt lgkmcnt(0)\ns_barrier")
    for arr in (1, 0):
        for it in range(4):
            r = 8 + 16 * arr + 4 * it
            o = (0 if arr else UO) + 64 * it
            A("ds_read_b64_tr_b16 %s, v5 offset:%d" % (v(r, 2), o))
            A("ds_read_b64_tr_b16 %s, v5 offset:%d" % (v(r + 2, 2), o + 4 * P))
    k = 0
    for arr in (1, 0):
        for it in range(4):
            r = 8 + 16 * arr + 4 * it
            A("s_waitcnt lgkmcnt(%d)" % (14 - 2 * k)); k += 1
            A("buffer_store_dwordx4 %s, v6, s[12:15], s5 offen offset:%d" % (v(r, 4), 2048 * (it & 1) + 32 * arr))
            if it == 1: A("v_add_u32 v6, 4096, v6")
        if arr: A("v_subrev_u32 v6, 4096, v6")
    A("s_endpgm")

ZSH = [0, 1, 2, 2, 3, 3, 3, 3]
ZRB = [0, 16, 25, 30, 35, 38, 41, 44]
RP = 528
def gen_kgen_tables(A, wr):
    for r in range(8, 14):
        A("v_lshlrev_b32 v%d, 16, v%d" % (r, r))
    A("""v_mov_b32 v14, s24
    v_mul_f32 v14, %s, v14
    v_mul_f32 v8, %s, v8
    v_exp_f32 v14, v14
    v_exp_f32 v8, v8
    v_max3_f32 v12, |v12|, |v13|, |v10|
    v_max_f32 v12, |v11|, v12""" % (f32(LOG2E), f32(LOG2E)))
    bf16r(A, 14, 14)
    bf16r(A, 8, 8)
    for sh in (8, 4, 2, 1):
        A("s_nop 1")
        A("v_max_f32_dpp v12, v12, v12 row_ror:%d row_mask:0xf bank_mask:0xf" % sh)
    A("""v_mul_f32 v8, v8, v14
    v_mul_f32 v9, v9, v14
    v_mov_b32 v13, v12
    v_mul_f32 v8, %s, v8
    s_nop 1
    v_permlane32_swap_b32 v12, v13
    v_mul_f32 v9, %s, v9
    v_max_f32 v12, v12, v13
    v_mov_b32 v13, v12
    s_nop 1
    v_permlane16_swap_b32 v12, v13
    s_nop 1
    v_max_f32 v12, v12, v13
    v_and_b32 v12, 0x7f800000, v12
    v_max_u32 v12, 0x0d800000, v12
    v_sub_u32 v13, 0x7f800000, v12
    v_mul_f32 v14, v14, v12""" % (f32(-LOG2E), f32(1.0 / (2 * 3.141592653589793))))
    A("v_mul_f32 v22, v10, v13\nv_mul_f32 v23, v11, v13")
    for (d, k) in ((16, 1), (18, 16), (20, 256)):
        A("v_mul_f32 v24, %s, v8" % f32(k))
        A("v_mul_f32 v25, %s, v9" % f32(k))
        A("v_exp_f32 v24, v24\nv_fract_f32 v25, v25\ns_nop 0")
        A("v_cos_f32 v%d, v25\nv_sin_f32 v%d, v25\ns_nop 0" % (d, d + 1))
        A("v_mul_f32 v%d, v%d, v24\nv_mul_f32 v%d, v%d, v24" % (d, d, d + 1, d + 1))
    E1, E16, E256, E2, E4, E8 = 16, 18, 20, 26, 28, 30
    Wt = [22, 32, 34, 36, 38, 40, 42, 44]
    cnt = [0]
    def put(row, x, neg):
        t = 60 + (cnt[0] & 3); cnt[0] += 1
        A("v_cvt_pk_f16_f32 v%d, v%d, %sv%d" % (t, x, "-" if neg else "", x + 1))
        A("ds_write_b32 v%d, v%d offset:%d" % (wr, t, row * RP))
    ch = []
    c0 = [(None, Wt[0], None, 0, 1)] + [(46, (Wt[0] if c == 1 else 46), E1, c, 1) for c in range(1, 16)]
    cv = [(None, 24, None, 47, 0), (None, E16, None, 48, 0)] + [(48, (E16 if m == 2 else 48), E16, 47 + m, 0) for m in range(2, 16)]
    cw = [(E2, E1, E1, None, 0), (Wt[1], Wt[0], E256, ZRB[1], 1), (E4, E2, E2, None, 0), (Wt[2], Wt[1], E256, ZRB[2], 1), (E8, E4, E4, None, 0)]
    cw += [(Wt[t], Wt[t - 1], E256, ZRB[t], 1) for t in range(3, 8)]
    for t in range(4, 8):
        cw += [(50, Wt[t], E8, ZRB[t] + 1, 1), (50, Wt[t], E16, ZRB[t] + 2, 1)]
    c1 = [None, None] + [(52, (Wt[1] if k == 1 else 52), E2, ZRB[1] + k, 1) for k in range(1, 9)]
    for t in (2, 3):
        c1 += [(52, (Wt[t] if k == 1 else 52), E4, ZRB[t] + k, 1) for k in range(1, 5)]
    A("v_mov_b32 v24, 1.0\nv_mov_b32 v25, 0")
    chains = [c0, cv, cw, c1]
    tmps = [54, 56, 58, 64]
    n = max(len(c) for c in chains)
    for i in range(n):
        st = [(c[i] if i < len(c) else None) for c in chains]
        for k, x in enumerate(st):
            if x and x[0] is not None:
                A("v_pk_mul_f32 %s, %s, %s op_sel:[0,0] op_sel_hi:[0,1]" % (v(tmps[k], 2), v(x[1], 2), v(x[2], 2)))
        for k, x in enumerate(st):
            if x and x[0] is not None:
                A("v_pk_fma_f32 %s, %s, %s, %s op_sel:[1,1,0] op_sel_hi:[1,0,1] neg_lo:[0,1,0]" % (v(x[0], 2), v(x[1], 2), v(x[2], 2), v(tmps[k], 2)))
        for k, x in enumerate(st):
            if x and x[3] is not None:
                put(x[3], x[0] if x[0] is not None else x[1], x[4])

def gen_kgen(A):
    A("""v_lshrrev_b32 v1, 6, v0
    v_and_b32 v2, 127, v0
    v_readfirstlane_b32 s5, v1
    s_lshr_b32 s6, s5, 1
    s_and_b32 s7, s5, 1
    s_lshl_b32 s4, s3, 1
    s_add_u32 s4, s4, s6
    s_lshl_b32 s25, s4, 8
    v_lshlrev_b32 v3, 1, v2
    v_xor_b32 v4, 128, v3
    buffer_load_ushort v8, v3, s[40:43], s25 offen
    buffer_load_ushort v9, v3, s[44:47], s25 offen
    buffer_load_ushort v10, v3, s[48:51], s25 offen
    buffer_load_ushort v11, v3, s[52:55], s25 offen
    buffer_load_ushort v12, v4, s[48:51], s25 offen
    buffer_load_ushort v13, v4, s[52:55], s25 offen
    s_mul_i32 s26, s6, 33280
    v_lshl_add_u32 v5, v2, 2, s26
    s_lshl_b32 s27, s24, 16
    s_and_b32 s24, s24, 0xffff0000
    s_cmp_eq_u32 s6, 0
    s_cselect_b32 s24, s27, s24""")
    A("""v_and_b32 v6, 15, v0
    v_sub_u32 v6, 15, v6
    v_bfe_u32 v7, v0, 4, 2
    s_cmp_eq_u32 s7, 0""")
    for tt in range(4):
        A("s_movk_i32 s28, %d\ns_cselect_b32 s28, %d, s28" % (256 * (tt + 4), 256 * tt))
        A("s_cselect_b32 s29, %d, %d" % (ZSH[tt], ZSH[tt + 4]))
        A("s_cselect_b32 s30, %d, %d" % (ZRB[tt], ZRB[tt + 4]))
        d = 66 + tt
        A("v_add_u32 v%d, s28, v6" % d)
        A("v_cvt_f32_u32 v%d, v%d" % (d, d))
        bf16r(A, d, d)
        A("v_cvt_u32_f32 v%d, v%d" % (d, d))
        A("v_subrev_u32 v%d, s28, v%d" % (d, d))
        A("v_lshrrev_b32 v%d, s29, v%d" % (d, d))
        A("v_add_u32 v%d, s30, v%d" % (d, d))
        A("v_mul_u32_u24 v%d, %d, v%d" % (d, RP, d))
        A("v_lshl_add_u32 v%d, v7, 4, v%d" % (d, d))
        A("v_add_u32 v%d, s26, v%d" % (d, d))
    A("""v_add_u32 v70, 47, v6
    v_mul_u32_u24 v70, %d, v70
    v_lshl_add_u32 v70, v7, 4, v70
    v_add_u32 v70, s26, v70
    v_and_b32 v71, 15, v0
    v_lshlrev_b32 v71, 5, v71
    v_lshl_add_u32 v71, v7, 3, v71
    s_mul_i32 s31, s4, %d
    s_add_u32 s31, s31, %d
    s_lshl_b32 s32, s7, 11
    s_sub_u32 s32, s31, s32
    s_waitcnt vmcnt(0)""" % (RP, KP, WS_KR))
    gen_kgen_tables(A, 5)
    A("s_waitcnt lgkmcnt(0)\ns_barrier")
    for ks in range(8):
        A("ds_read_b128 %s, v70 offset:%d" % (v(16 + 4 * ks, 4), 64 * ks))
    def rdA(tt):
        for ks in range(8):
            A("ds_read_b128 %s, v%d offset:%d" % (v(80 + 32 * (tt & 1) + 4 * ks, 4), 66 + tt, 64 * ks))
    rdA(0)
    for tt in range(4):
        if tt < 3: rdA(tt + 1)
        for ks in range(8):
            if tt < 3: A("s_waitcnt lgkmcnt(%d)" % (15 - ks))
            else: A("s_waitcnt lgkmcnt(%d)" % (7 - ks))
            A("v_mfma_f32_16x16x32_f16 %s, %s, %s, %s" % (v(48 + 4 * tt, 4), v(80 + 32 * (tt & 1) + 4 * ks, 4), v(16 + 4 * ks, 4), "0" if ks == 0 else v(48 + 4 * tt, 4)))
    A("s_nop 7\ns_nop 1")
    for tt in range(4):
        r = 48 + 4 * tt
        A("v_cvt_pk_f16_f32 v%d, v%d, v%d" % (r, r, r + 1))
        A("v_cvt_pk_f16_f32 v%d, v%d, v%d" % (r + 1, r + 2, r + 3))
        A("buffer_store_dwordx2 %s, v71, s[12:15], s32 offen offset:%d" % (v(r, 2), 3584 - 512 * tt))
    A("""v_and_b32 v6, 63, v0
    v_lshlrev_b32 v7, 3, v6
    v_mov_b32 v8, 0
    v_mov_b32 v9, 0
    s_add_u32 s31, s31, 4096
    s_lshl_b32 s33, s4, 2
    s_add_u32 s33, s33, %d
    s_mov_b64 exec, 0xff
    buffer_store_dwordx2 v[8:9], v7, s[12:15], s31 offen
    s_mov_b64 exec, 1
    buffer_store_dword v14, v7, s[12:15], s33 offen
    s_endpgm""" % WS_SC)

def gen_colsum(A):
    A("""s_cmp_lt_u32 s3, 8
    s_cselect_b32 s8, s16, s18
    s_cselect_b32 s9, s17, s19
    s_mov_b32 s10, 0x1c0000
    s_cselect_b32 s10, 0x80000, s10
    s_movk_i32 s4, 3584
    s_cselect_b32 s4, 1024, s4
    s_cselect_b32 s5, 0, 8
    s_mov_b32 s6, %d
    s_cselect_b32 s6, %d, s6
    s_and_b32 s9, s9, 0xffff
    s_mov_b32 s11, 0x20000
    s_sub_u32 s5, s3, s5
    s_lshl_b32 s7, s5, 7
    v_lshrrev_b32 v1, 3, v0
    v_and_b32 v2, 7, v0
    v_mul_lo_u32 v3, v1, s4
    v_lshl_add_u32 v3, v2, 4, v3
    s_lshl_b32 s4, s4, 5""" % (WS_CS3, WS_CS1))
    for p in range(16):
        A("buffer_load_dwordx4 %s, v3, s[8:11], s7 offen" % v(16 + 4 * p, 4))
        if p < 15: A("s_add_u32 s7, s7, s4")
    A("s_mov_b32 s20, 0x3f80\ns_mov_b32 s21, 0x3f800000")
    for j in range(8): A("v_mov_b32 v%d, 0" % (8 + j))
    for p in range(16):
        A("s_waitcnt vmcnt(%d)" % (15 - p))
        for e in range(4):
            A("v_dot2_f32_bf16 v%d, v%d, s20, v%d" % (8 + 2 * e, 16 + 4 * p + e, 8 + 2 * e))
            A("v_dot2_f32_bf16 v%d, v%d, s21, v%d" % (9 + 2 * e, 16 + 4 * p + e, 9 + 2 * e))
    A("""v_lshlrev_b32 v4, 5, v0
    s_nop 3
    ds_write_b128 v4, v[8:11]
    ds_write_b128 v4, v[12:15] offset:16
    s_waitcnt lgkmcnt(0)
    s_barrier
    v_cmp_gt_u32 vcc, 64, v0
    s_and_saveexec_b64 s[22:23], vcc
    s_cbranch_execz L_k1_end
    v_lshlrev_b32 v4, 2, v0""")
    for j in range(32):
        A("ds_read_b32 v%d, v4 offset:%d" % (16 + j, 256 * j))
    A("s_waitcnt lgkmcnt(0)")
    for st in (16, 8, 4, 2, 1):
        for j in range(st):
            A("v_add_f32 v%d, v%d, v%d" % (16 + j, 16 + j, 16 + j + st))
    A("""s_lshl_b32 s5, s5, 8
    s_add_u32 s5, s5, s6
    buffer_store_dword v16, v4, s[12:15], s5 offen
    s_endpgm""")

def gen_k1(A):
    A.l.append(".p2align 8"); A.label("k1_kernel")
    A("""s_cmp_ge_u32 s2, %d
    s_cbranch_scc1 L_k1_end
    s_load_dwordx2 s[6:7], s[0:1], 112
    s_cmp_ge_u32 s2, %d
    s_cbranch_scc1 L_k1_kgen
    s_cmp_ge_u32 s2, %d
    s_cbranch_scc1 L_k1_ln
    s_load_dwordx2 s[16:17], s[0:1], 64
    s_load_dwordx2 s[18:19], s[0:1], 80
    s_mov_b32 s3, s2
    s_waitcnt lgkmcnt(0)""" % (K1_GRID, K1_NCS + K1_NLN, K1_NCS))
    srd(A, 12, 6, WS_END)
    gen_colsum(A)
    A.label("L_k1_ln")
    A("s_load_dwordx2 s[4:5], s[0:1], 0\ns_sub_u32 s3, s2, %d\ns_waitcnt lgkmcnt(0)" % K1_NCS)
    srd(A, 8, 4, 0x200000); srd(A, 12, 6, WS_END)
    gen_ln1(A)
    A.label("L_k1_kgen")
    A("""s_load_dwordx8 s[56:63], s[0:1], 8
    s_load_dwordx2 s[4:5], s[0:1], 40
    s_sub_u32 s3, s2, %d
    s_lshl_b32 s8, s3, 2
    s_waitcnt lgkmcnt(0)
    s_load_dword s24, s[4:5], s8""" % (K1_NCS + K1_NLN))
    for i in range(4): srd(A, 40 + 4 * i, 56 + 2 * i, 0x20000)
    srd(A, 12, 6, WS_END)
    A("s_waitcnt lgkmcnt(0)")
    gen_kgen(A)
    A.label("L_k1_end")
    A("s_endpgm")
    return ("k1_kernel", K1_GRID, 256, K1_LDS, 144, 0)
```

```python
from g_base import *
K2_LDS = 34048 + 16384

def sched(A, loads, ops, per=2, maxout=14, pre=8):
    issued = []
    n_inst = [0]
    nxt = [0]
    done = [0]
    def issue(opi, lim):
        k = 0
        while nxt[0] < len(loads) and k < lim:
            L = loads[nxt[0]]
            if L["after"] >= opi: break
            if n_inst[0] - done[0] + len(L["txt"]) > maxout and lim < 99: break
            for t in L["txt"]: A(t)
            n_inst[0] += len(L["txt"]); issued.append(n_inst[0]); nxt[0] += 1; k += len(L["txt"])
    issue(0, pre)
    for i, o in enumerate(ops):
        m = max(o["need"]) if o["need"] else -1
        while nxt[0] <= m: issue(i, 99 if loads[nxt[0]]["after"] < i else 0) if False else issue1(A, loads, nxt, n_inst, issued)
        if m >= 0 and issued[m] > done[0]:
            A("s_waitcnt lgkmcnt(%d)" % min(15, n_inst[0] - issued[m])); done[0] = issued[m]
        A(o["txt"])
        issue(i + 1, per)
def issue1(A, loads, nxt, n_inst, issued):
    L = loads[nxt[0]]
    for t in L["txt"]: A(t)
    n_inst[0] += len(L["txt"]); issued.append(n_inst[0]); nxt[0] += 1

def conv_main(A, vA, vB, ACC, BR, AR):
    loads = []; ops = []; lidA = {}; lidB = {}; lastuse = {}
    NS = 4
    seq = []
    for q in range(32):
        for j in range(7, -1, -1):
            f = 4 * j + 3 - q
            if f >= 0: seq.append((q, j, f))
    for i, (q, j, f) in enumerate(seq): lastuse[q] = i
    for q in range(32):
        b, t = q >> 3, q & 7
        r = AR + 4 * (q % NS); o = 32 * (7 - t)
        lidA[q] = len(loads)
        loads.append(dict(txt=["ds_read2_b32 %s, v%d offset0:%d offset1:%d" % (v(r, 2), vA + b, o, o + 1),
                               "ds_read2_b32 %s, v%d offset0:%d offset1:%d" % (v(r + 2, 2), vA + b, o + 2, o + 3)],
                          after=(lastuse[q - NS] if q >= NS else -1)))
        if q < 4:
            for j in range(7, -1, -1):
                f = 4 * j + 3 - q
                lidB[f] = len(loads)
                loads.append(dict(txt=["ds_read_b128 %s, v%d offset:%d" % (v(BR + 4 * f, 4), vB, 128 * f)], after=-1))
    seen = set()
    for (q, j, f) in seq:
        c = v(ACC + 4 * j, 4) if j in seen else "0"
        seen.add(j)
        ops.append(dict(txt="v_mfma_f32_16x16x32_f16 %s, %s, %s, %s" % (v(ACC + 4 * j, 4), v(AR + 4 * (q % NS), 4), v(BR + 4 * f, 4), c), need=[lidA[q], lidB[f]]))
    sched(A, loads, ops)

def gen_k2(A):
    A.l.append(".p2align 8"); A.label("k2_kernel")
    A("""s_cmp_ge_u32 s2, 256
    s_cbranch_scc1 L_k2_end
    s_load_dwordx2 s[6:7], s[0:1], 112
    s_load_dwordx2 s[16:17], s[0:1], 48
    v_lshrrev_b32 v1, 6, v0
    v_and_b32 v2, 63, v0
    v_readfirstlane_b32 s5, v1
    s_and_b32 s3, s2, 7
    s_lshl_b32 s3, s3, 5
    s_lshr_b32 s4, s2, 3
    s_add_u32 s3, s3, s4
    s_lshr_b32 s8, s5, 1
    s_and_b32 s9, s5, 1
    s_lshl_b32 s4, s3, 1
    s_add_u32 s4, s4, s8
    s_mul_i32 s10, s8, 17024
    v_lshrrev_b32 v3, 1, v2
    v_lshlrev_b32 v3, 15, v3
    v_and_b32 v4, 1, v2
    v_lshl_add_u32 v3, v4, 4, v3
    v_lshlrev_b32 v4, 4, v2
    s_mul_i32 s18, s4, %d
    s_lshl_b32 s19, s9, 1
    s_sub_u32 s18, s18, s19
    s_add_u32 s18, s18, %d
    s_mul_i32 s19, s9, 4160
    s_add_u32 s19, s19, s10
    s_add_u32 s19, s19, 8704
    s_lshl_b32 s20, s4, 6
    s_lshl_b32 s21, s9, 21
    s_add_u32 s20, s20, s21
    s_lshl_b32 s21, s9, 11
    s_add_u32 s21, s21, s10
    s_lshl_b32 s22, s3, 2
    s_lshl_b32 s23, s4, 2
    s_add_u32 s23, s23, %d
    s_waitcnt lgkmcnt(0)""" % (KP, WS_KR + 2, WS_SC))
    srd(A, 12, 6, WS_END)
    A("""s_load_dword s24, s[16:17], s22
    s_load_dword s26, s[6:7], s23
    s_add_u32 m0, s21, 512
    s_add_u32 s25, s20, 0x100000
    buffer_load_dwordx4 v3, s[12:15], s20 offen lds
    s_add_u32 m0, s21, 1536
    s_add_u32 s20, s20, 32
    buffer_load_dwordx4 v3, s[12:15], s25 offen lds
    s_mov_b32 m0, s19
    s_add_u32 s25, s25, 32""")
    for i in range(4):
        A("buffer_load_dwordx4 v4, s[12:15], s18 offen offset:%d lds" % (1024 * i))
    A("""s_add_u32 m0, s21, 4608
    v_mov_b32 v8, 0
    buffer_load_dwordx4 v3, s[12:15], s20 offen lds
    s_add_u32 m0, s21, 5632
    v_mov_b32 v9, 0
    buffer_load_dwordx4 v3, s[12:15], s25 offen lds
    v_lshl_add_u32 v5, v2, 3, s10
    ds_write_b64 v5, v[8:9]
    v_and_b32 v6, 15, v2
    v_lshl_add_u32 v5, v6, 2, s19
    ds_write_b32 v5, v8 offset:4096
    v_bfe_u32 v7, v2, 4, 2
    v_and_b32 v10, 1, v2
    v_mul_u32_u24 v10, 4160, v10
    v_lshl_add_u32 v10, v7, 4, v10
    v_bfe_u32 v11, v2, 1, 3
    v_lshlrev_b32 v11, 2, v11
    v_sub_u32 v10, v10, v11
    s_lshl_b32 s27, s9, 6
    s_sub_u32 s28, s10, s27
    s_add_u32 s29, s28, %d
    v_add_u32 v12, s29, v10
    v_subrev_u32 v13, 1024, v12
    v_subrev_u32 v14, 2048, v12
    v_subrev_u32 v15, 3072, v12
    v_lshlrev_b32 v10, 5, v6
    v_lshl_add_u32 v11, v7, 4, v10
    s_add_u32 s28, s28, 96
    v_add_u32 v11, s28, v11
    v_lshl_add_u32 v10, v7, 3, v10
    s_waitcnt vmcnt(2) lgkmcnt(0)
    s_barrier""" % (8704 + 4060 - 64 * 14))
    conv_main(A, 12, 11, 32, 64, 16)
    A("""s_lshl_b32 s27, s5, 12
    s_add_u32 s27, s27, 34048
    v_add_u32 v5, s27, v4
    v_xor_b32 v6, 4096, v5
    v_add_u32 v7, s21, v10
    s_lshl_b32 s27, s24, 16
    s_and_b32 s24, s24, 0xffff0000
    s_cmp_eq_u32 s8, 0
    s_cselect_b32 s24, s27, s24
    s_mov_b32 s27, s26
    s_lshl_b32 s28, s4, 12
    s_lshl_b32 s29, s9, 11
    s_add_u32 s28, s28, s29
    s_add_u32 s28, s28, %d
    s_waitcnt vmcnt(0)
    s_nop 4
    s_cmp_eq_u32 s9, 0
    s_cbranch_scc1 L_k2_a""" % WS_HT)
    for t in range(4): A("ds_write_b128 v5, %s offset:%d" % (v(32 + 4 * t, 4), 1024 * t))
    for k in range(16): A("v_mov_b32 v%d, v%d" % (16 + k, 48 + k))
    A("s_branch L_k2_b")
    A.label("L_k2_a")
    for t in range(4): A("ds_write_b128 v5, %s offset:%d" % (v(48 + 4 * t, 4), 1024 * t))
    for k in range(16): A("v_mov_b32 v%d, v%d" % (16 + k, 32 + k))
    A.label("L_k2_b")
    A("s_waitcnt lgkmcnt(0)\ns_barrier")
    for t in range(4):
        A("ds_read_b128 %s, v6 offset:%d" % (v(64 + 4 * t, 4), 1024 * t))
        A("ds_read_b64 %s, v7 offset:%d" % (v(80 + 2 * t, 2), 4608 + 512 * t))
        A("ds_read_b64 %s, v7 offset:%d" % (v(88 + 2 * t, 2), 512 + 512 * t))
    for t in range(4):
        A("s_waitcnt lgkmcnt(%d)" % (9 - 3 * t))
        for h in range(2):
            r = 16 + 4 * t + 2 * h; x = 80 + 2 * t + h; u = 88 + 2 * t + h
            A("v_pk_add_f32 %s, %s, %s" % (v(r, 2), v(r, 2), v(64 + 4 * t + 2 * h, 2)))
            A("v_lshlrev_b32 v96, 16, v%d\nv_and_b32 v97, 0xffff0000, v%d" % (x, x))
            A("v_pk_fma_f32 %s, %s, s[26:27], v[96:97]" % (v(r, 2), v(r, 2)))
            A("v_fma_mix_f32 v%d, v%d, s24, v%d op_sel_hi:[1,0,0]" % (r, u, r))
            A("v_fma_mix_f32 v%d, v%d, s24, v%d op_sel:[1,0,0] op_sel_hi:[1,0,0]" % (r + 1, u, r + 1))
            A("v_cvt_pk_bf16_f32 v%d, v%d, v%d" % (98 + 2 * t + h, r, r + 1))
        A("buffer_store_dwordx2 %s, v10, s[12:15], s28 offen offset:%d" % (v(98 + 2 * t, 2), 512 * t))
    A.label("L_k2_end")
    A("s_endpgm")
    return ("k2_kernel", 256, 256, K2_LDS, 192, 0)
```

```python
import sys, importlib
sys.path.insert(0, "work")
from g_base import *
import hz
def build(gens, path, prof=False):
    A = Asm(); A.prof = prof
    ks = [g(A) for g in gens]
    A.l, nadd = hz.fix(A.l)
    hdr = "".join("; @launch kernel=%s grid=(%d,1,1) block=(%d,1,1) lds=%d\n" % (k[0], k[1], k[2], k[3]) for k in ks)
    s_ = hdr + '.amdgcn_target "amdgcn-amd-amdhsa--gfx950"\n.text\n' + A.text() + '.section .rodata,"a"\n' + "".join(kd(k[0], k[4], k[5]) for k in ks)
    open(path, "w").write(s_)
    return path
```

```python
import re
TRANS = ("v_exp_f32", "v_log_f32", "v_rcp_f32", "v_rsq_f32", "v_sqrt_f32", "v_sin_f32", "v_cos_f32")
def regs(tok):
    tok = tok.strip().lstrip("-").strip("|")
    m = re.match(r"^([vas])(\d+)$", tok)
    if m: return {(m.group(1), int(m.group(2)))}
    m = re.match(r"^([vas])\[(\d+):(\d+)\]$", tok)
    if m: return {(m.group(1), i) for i in range(int(m.group(2)), int(m.group(3)) + 1)}
    if tok == "vcc": return {("s", 106), ("s", 107)}
    if tok == "m0": return {("m", 0)}
    if tok == "exec": return {("e", 0)}
    return set()
def parse(line):
    t = line.split(";")[0].strip()
    if not t or t.endswith(":") or t.startswith("."): return None
    p = t.split(None, 1)
    op = p[0]
    ops = []
    mods = ""
    if len(p) > 1:
        parts = [x.strip() for x in p[1].split(",")]
        for x in parts:
            y = x.split()
            ops.append(y[0]); mods += " " + " ".join(y[1:])
    R = [regs(o) for o in ops]
    d = dict(op=op, w=set(), r=set(), kind="other", mods=mods, srcC=set(), ab=set(), data=set())
    U = lambda L: set().union(*L) if L else set()
    if op.startswith("v_mfma"):
        d.update(kind="mfma", w=R[0], r=U(R[1:]), srcC=R[3], ab=R[1] | R[2], passes=(8 if "32x32" in op else 4))
    elif op.startswith("v_"):
        d["kind"] = "valu"
        if "permlane" in op and "swap" in op: d.update(w=R[0] | R[1], r=R[0] | R[1])
        elif op.startswith("v_cmp"): d.update(w=R[0], r=U(R[1:]))
        elif "_co_" in op: d.update(w=R[0] | R[1], r=U(R[2:]))
        else:
            d.update(w=R[0], r=U(R[1:]))
            if op.startswith("v_cndmask") and len(ops) == 3: d["r"] = d["r"] | regs("vcc")
            if op.startswith(("v_fmac", "v_mac", "v_dot2c")) or "dpp" in op: d["r"] = d["r"] | R[0]
    elif op.startswith(("buffer_", "global_")):
        d["kind"] = "vmem"
        if "lds" in mods.split(): d.update(r=U(R) | {("m", 0)}); d["dma"] = 1
        elif "load" in op: d.update(w=R[0], r=U(R[1:]))
        else:
            d.update(r=U(R))
            if "x4" in op or "x3" in op: d["data"] = R[0]
    elif op.startswith("ds_"):
        d["kind"] = "ds"
        if "read" in op or "bpermute" in op or "swizzle" in op: d.update(w=R[0], r=U(R[1:]))
        else: d.update(r=U(R))
    elif op.startswith("s_"):
        d["kind"] = "salu"
        if op == "s_nop": d["nop"] = int(ops[0], 0) + 1
        elif op.startswith(("s_cmp", "s_waitcnt", "s_barrier", "s_cbranch", "s_branch", "s_endpgm", "s_setprio", "s_sleep", "s_bitcmp")): d.update(r=U(R))
        else: d.update(w=R[0] if R else set(), r=U(R[1:]))
    return d
def need(p, c):
    n = 0
    vw = {x for x in p["w"] if x[0] in "va"}
    sw = {x for x in p["w"] if x[0] == "s"}
    if p["kind"] == "valu":
        if vw & c["r"]:
            if c["kind"] == "valu" and ("dpp" in c["op"] or "row_" in c["mods"] or "permlane" in c["op"]): n = max(n, 2)
            if c["op"].startswith(("v_readlane", "v_readfirstlane")): n = max(n, 1)
            if c["kind"] == "mfma": n = max(n, 2)
            if p["op"].startswith(TRANS) and c["kind"] != "salu" and not c["op"].startswith(TRANS): n = max(n, 1)
            if p["op"].startswith("v_dot"): n = max(n, 0 if (c["op"] == p["op"] and False) else 3)
        if p["op"].startswith("v_dot") and (vw & c["w"]) and c["op"] != p["op"]: n = max(n, 3)
        if sw & c["r"]:
            if c["kind"] == "valu": n = max(n, 4 if "lane" in c["op"] and not "first" in c["op"] else 2)
            if c["kind"] == "vmem": n = max(n, 5)
        if ("e", 0) in p["w"] and c["kind"] in ("valu", "mfma"): n = max(n, 5)
    if p["kind"] == "salu" and ("m", 0) in p["w"] and (c.get("dma") or "addtid" in c["op"]): n = max(n, 1)
    if p["kind"] == "mfma":
        big = p["passes"] == 8
        if c["kind"] == "mfma":
            if vw & c["ab"]: n = max(n, 12 if big else 8)
            if vw & c["srcC"] and not (c["srcC"] == vw and c["passes"] == p["passes"]): n = max(n, 10 if big else 6)
            if vw & c["w"] and not (c["srcC"] == vw): n = max(n, 10 if big else 6)
        elif c["kind"] in ("valu", "vmem", "ds"):
            if vw & (c["r"] | c["w"]): n = max(n, 12 if big else 8)
            if c["kind"] == "valu" and p["srcC"] & c["w"]: n = max(n, 7 if big else 3)
    if p["kind"] == "vmem" and p["data"] & c["w"]: n = max(n, 2)
    return n
def fix(lines):
    out = []; hist = []
    added = 0
    for ln in lines:
        c = parse(ln)
        if c is None:
            out.append(ln); continue
        req = 0
        dist = 0
        for p in reversed(hist):
            if dist >= 12: break
            k = need(p, c) - dist
            if k > req: req = k
            dist += p.get("nop", 1)
        if req > 0:
            out.append("  s_nop %d" % (req - 1)); hist.append(parse("s_nop %d" % (req - 1))); added += 1
        out.append(ln); hist.append(c)
        if c["op"] == "s_endpgm": hist = []
        hist = hist[-14:]
    return out, added
```

```python
import sys
sys.path.insert(0, "work")
from hx import *
from gen import *
from g_k1 import gen_k1
from g_k2 import gen_k2
from g_gemm import gen_gemm
G = [gen_k1, gen_k2] + [(lambda w: (lambda A: gen_gemm(A, w)))(w) for w in (1, 2, 3, 4)]
def fo(a, C):
    return a.reshape(128, C // 32, 4, 16, 8).transpose(0, 3, 1, 2, 4).reshape(2048, C)
def cmp(n, a, b):
    e = a - b
    print("%s: err max %.4g rms %.4g ref rms %.4g rel %.4g" % (n, np.abs(e).max(), np.sqrt((e ** 2).mean()), np.sqrt((b ** 2).mean()), np.sqrt((e ** 2).mean() / (b ** 2).mean())))
if __name__ == "__main__":
    if len(sys.argv) > 1:
        build(G, sys.argv[1]); sys.exit(0)
    z, inputs = load_ref(0)
    p = build(G, "all.s")
    r = Runner(p, inputs)
    r.reset(); r.launch(); r.sync()
    R = lambda n, C=512: bf16_to_f32(z["t_" + n].reshape(2048, C))
    W = lambda off, C=512: bf16_to_f32(fo(r.get_ws(off, np.uint16, (2048 * C,)), C))
    cmp("h", W(WS_H), R("h"))
    h1 = R("h1"); hs = np.zeros_like(h1)
    hs[1:, :128] = h1[:-1, :128]; hs[:-1, 128:256] = h1[1:, 128:256]; hs[2:, 256:384] = h1[:-2, 256:384]; hs[:-2, 384:] = h1[2:, 384:]
    cmp("h1s", W(WS_H1), hs)
    cmp("x1", W(WS_X1), R("x1"))
    cmp("h3", W(WS_H3, 1792), R("h3", 1792))
    cmp("out", r.get_out(), bf16_to_f32(z["ref"].reshape(2048, 512)))
    for c in range(1, 7): print("time first %d:" % c, r.time(10, count=c))
```

```python
NAME = "sequential_preLN__ssm_conv_s4d__mixer_s_mlp__prompt"
WS_UX   = 0x000000
WS_KR   = 0x400000
KP      = 4160
WS_SC   = 0x620000
WS_CS1  = 0x621000
WS_CS3  = 0x622000
WS_ST1  = 0x624000
WS_P3   = 0x630000
WS_HT   = 0x700000
WS_H    = 0x900000
WS_H1   = 0xB00000
WS_X1   = 0xD00000
WS_H3   = 0xF00000
WS_FLAG = 0x1600000
WS_ST0  = 0x1610000
WS_PROF = 0x1680000
WS_END  = 0x1800000

class Asm:
    def __init__(self):
        self.l = []
        self.uid = 0
    def __call__(self, s):
        for x in s.strip("\n").split("\n"):
            self.l.append("  " + x.strip())
    def label(self, n):
        self.l.append(n + ":")
    def new(self, p="L"):
        self.uid += 1
        return "%s_%d" % (p, self.uid)
    prof = False
    def pstart(self):
        if not self.prof: return
        self("s_memrealtime s[62:63]\nv_lshrrev_b32 v1, 6, v0\ns_nop 0\nv_readfirstlane_b32 s95, v1\ns_waitcnt lgkmcnt(0)\ns_mov_b32 s64, s62")
        for i in range(1, 16): self("s_mov_b32 s%d, 0" % (64 + i))
    def stamp(self, i):
        if not self.prof: return
        self("s_memrealtime s[62:63]\ns_waitcnt lgkmcnt(0)\ns_mov_b32 s%d, s62" % (64 + i))
    def pend(self, kid):
        if not self.prof: return
        self("s_waitcnt vmcnt(0)\ns_memrealtime s[62:63]\ns_mov_b64 exec, 1\ns_lshl_b32 s94, s2, 3\ns_add_u32 s94, s94, s95\ns_lshl_b32 s94, s94, 6\ns_add_u32 s94, s94, %d\nv_mov_b32 v1, 0\ns_waitcnt lgkmcnt(0)\ns_mov_b32 s79, s62" % (WS_PROF + kid * 0x40000))
        for i in range(16): self("v_mov_b32 v%d, s%d" % (4 + i, 64 + i))
        for i in range(4): self("buffer_store_dwordx4 v[%d:%d], v1, s[12:15], s94 offen offset:%d" % (4 + 4 * i, 7 + 4 * i, 16 * i))
    def text(self):
        return "\n".join(self.l) + "\n"

def v(a, n=1):
    return "v%d" % a if n == 1 else "v[%d:%d]" % (a, a + n - 1)
def a_(a, n=1):
    return "a%d" % a if n == 1 else "a[%d:%d]" % (a, a + n - 1)
def s(a, n=1):
    return "s%d" % a if n == 1 else "s[%d:%d]" % (a, a + n - 1)

def kd(name, vgpr, agpr=0, sgpr=96):
    acc = (vgpr + 3) // 4 * 4
    return """.p2align 6
.amdhsa_kernel %s
  .amdhsa_next_free_vgpr %d
  .amdhsa_next_free_sgpr %d
  .amdhsa_accum_offset %d
  .amdhsa_group_segment_fixed_size 0
  .amdhsa_kernarg_size 120
  .amdhsa_user_sgpr_count 2
  .amdhsa_user_sgpr_kernarg_segment_ptr 1
  .amdhsa_system_sgpr_workgroup_id_x 1
.end_amdhsa_kernel
""" % (name, acc + agpr, sgpr, acc)

def srd(A, dst, ptr, size):
    A("s_mov_b32 s%d, s%d" % (dst, ptr))
    A("s_and_b32 s%d, s%d, 0xffff" % (dst + 1, ptr + 1))
    A("s_mov_b32 s%d, 0x%x" % (dst + 2, size))
    A("s_mov_b32 s%d, 0x20000" % (dst + 3))

def bf16r(A, d, x):
    A("v_cvt_pk_bf16_f32 v%d, v%d, v%d" % (d, x, x))
    A("v_and_b32 v%d, 0xffff0000, v%d" % (d, d))

def cmul(A, d, a, b, t):
    A("v_pk_mul_f32 %s, %s, %s op_sel:[0,0] op_sel_hi:[0,1]" % (v(t, 2), v(a, 2), v(b, 2)))
    A("v_pk_fma_f32 %s, %s, %s, %s op_sel:[1,1,0] op_sel_hi:[1,0,1] neg_lo:[0,1,0]" % (v(d, 2), v(a, 2), v(b, 2), v(t, 2)))

LOG2E = 1.4426950408889634
import struct
def f32(x):
    return "0x%08x" % struct.unpack("<I", struct.pack("<f", x))[0]
```

```python
import g_base
from g_base import *
from g_k1 import rowstats, gen_kgen_tables, ZSH, ZRB, RP
from g_k2 import conv_main
from g_gemm import gelu8, gelu_consts, VM
HT, H1, X1, H3, P3, FLG, PROF, UX, WEND = 0, 0x200000, 0x400000, 0x600000, 0xD00000, 0xD60000, 0xD80000, 0xE00000, 0x1200000
g_base.WS_PROF = PROF
F1, F2, BL, BG = FLG, FLG + 0x1000, FLG + 0x2000, FLG + 0x3000
FL = {3: FLG + 0x4000, 4: FLG + 0x5000, 5: FLG + 0x6000}
FG = {3: FLG + 0x8000, 4: FLG + 0xC000, 5: FLG + 0x10000}
R0 = 65536; TB = R0 + 17408; RED = 98304
SYNCW = TB + 20 * RP + 512; TOKW = TB + 21 * RP + 512; LSW = TB + 22 * RP + 512; CNTW = LSW + 8
TP = 2080
SPIN = 100000
TOK = "s93"
NS = {1: 8, 2: 8, 3: 16, 4: 28}

def schedule():
    hA = {g: [None] * NS[g] for g in NS}; hB = {g: [None] * NS[g] for g in NS}
    iA = []; iB = []
    def A_(b, g, s, h): hA[g][s] = h; iA.append((b, g, s))
    def B_(b, g, s, h): hB[g][s] = h; iB.append((b, g, s))
    for s in range(8): A_("B0", 1, s, s)
    for s in range(4): A_("B1", 2, s, 16 + s)
    for s in range(8): B_("P1", 1, s, 8 + s)
    for s in range(4): A_((1, 2 + s), 2, 4 + s, s)
    A_((1, 6), 3, 0, 4); A_((1, 7), 3, 1, 5); A_("E1", 3, 2, 6); A_("E1", 3, 3, 7)
    for s in range(8): B_("P2", 2, s, 8 + s)
    for s in range(6):
        A_((2, s + 2), 3, 4 + 2 * s, hA[2][s]); A_((2, s + 2), 3, 5 + 2 * s, hB[2][s])
    fr = [hA[2][6], hB[2][6], hA[2][7], hB[2][7]]
    for s in range(4): B_("P3", 3, s, fr[s])
    for s in range(6):
        B_((3, s + 2), 3, 4 + 2 * s, hA[3][s]); B_((3, s + 2), 3, 5 + 2 * s, hB[3][s])
    for s in range(6, 12):
        A_((3, s + 2), 4, 2 * (s - 6), hA[3][s]); A_((3, s + 2), 4, 2 * (s - 6) + 1, hB[3][s])
    fr = []
    for s in range(12, 16): fr += [hA[3][s], hB[3][s]]
    for s in range(8): B_("P4", 4, s, fr[s])
    for s in range(20):
        B_((4, s + 2), 4, s + 8, hB[4][s])
        if s + 12 < 28: A_((4, s + 2), 4, s + 12, hA[4][s])
    return hA, hB, iA, iB

def poll(A, vaddr, soff, nd, lanes=None):
    L = A.new("L_poll"); D = A.new("L_polld")
    if lanes: A("s_mov_b64 exec, %s" % lanes)
    A("s_mov_b32 s30, 0")
    A.label(L)
    A("buffer_load_dword%s %s, v%d, s[12:15], %s offen sc1" % ("" if nd == 1 else "x%d" % nd, v(90, nd), vaddr, soff))
    A("s_add_u32 s30, s30, 1\ns_waitcnt vmcnt(0)")
    if nd == 1: A("v_cmp_ne_u32 vcc, %s, v90" % TOK)
    else:
        for i in range(nd): A("v_xor_b32 v%d, %s, v%d" % (90 + i, TOK, 90 + i))
        if nd == 4: A("v_or3_b32 v90, v90, v92, v93")
        A("v_or_b32 v90, v90, v91\nv_cmp_ne_u32 vcc, 0, v90")
    A("s_cbranch_vccz %s\ns_cmp_lt_u32 s30, %d\ns_cbranch_scc1 %s" % (D, SPIN, L))
    A.label(D)
    if lanes: A("s_mov_b64 exec, -1")

def pairsync(A, k, vo, vp, t):
    L = A.new("L_ps"); D = A.new("L_psd")
    A("v_mov_b32 v%d, %d\ns_waitcnt lgkmcnt(0)\nds_write_b32 v%d, v%d\ns_mov_b32 s30, 0" % (t, k, vo, t))
    A.label(L)
    A("""ds_read_b32 v%d, v%d
    s_add_u32 s30, s30, 1
    s_waitcnt lgkmcnt(0)
    v_readfirstlane_b32 s31, v%d
    s_cmp_ge_u32 s31, %d
    s_cbranch_scc1 %s
    s_cmp_lt_u32 s30, 0x%x
    s_cbranch_scc1 %s""" % (t, vp, t, k, D, SPIN * 16, L))
    A.label(D)

def setflag(A, k, idx4):
    A("""s_lshl_b32 s31, %s, 2
    v_mov_b32 v1, %d
    v_mov_b32 v3, %d
    v_mov_b32 v2, %s
    s_mov_b64 exec, 1
    s_waitcnt vmcnt(0)
    buffer_store_dword v2, v1, s[12:15], %s offen
    buffer_store_dword v2, v3, s[12:15], s31 offen sc1
    s_mov_b64 exec, -1""" % (idx4, FL[k], FG[k], TOK, idx4))

def allsync(A, base, k):
    F = A.new("L_fol"); D = A.new("L_asd"); L = A.new("L_pa"); L2 = A.new("L_pb"); X = A.new("L_pax")
    A("""s_lshl_b32 s18, s3, 8
    s_add_u32 s18, s18, %d
    s_mov_b32 s30, 0
    s_add_u32 s31, s4, s7
    s_cmp_lg_u32 s31, 0
    s_cbranch_scc1 %s
    v_lshlrev_b32 v7, 4, v0
    v_add_u32 v7, %d, v7""" % (k * 0x800, F, base))
    A.label(L)
    for i in range(4): A("buffer_load_dword v%d, v7, s[12:15], 0 offen offset:%d sc1" % (90 + i, 1024 * i))
    A("s_add_u32 s30, s30, 1\ns_waitcnt vmcnt(0)")
    for i in range(4): A("v_xor_b32 v%d, %s, v%d" % (90 + i, TOK, 90 + i))
    A("""v_or3_b32 v90, v90, v92, v93
    v_or_b32 v90, v90, v91
    v_cmp_lt_u32 vcc, 1, v90
    s_cbranch_vccz %s
    s_cmp_lt_u32 s30, %d
    s_cbranch_scc1 %s""" % (X, SPIN, L))
    A.label(X)
    A("""v_cmp_eq_u32 vcc, 1, v90
    s_cmp_lg_u64 vcc, 0
    s_cselect_b32 s92, 1, 0
    s_or_b32 s92, s92, %s
    v_mov_b32 v90, s92
    v_lshlrev_b32 v7, 2, v0
    v_add_u32 v91, %d, v7
    v_add_u32 v7, %d, v7
    s_mov_b64 exec, 0xffffffff
    buffer_store_dword v90, v91, s[12:15], s18 offen
    s_mov_b64 exec, 1
    buffer_store_dword v90, v7, s[12:15], s18 offen sc1
    s_branch %s""" % (TOK, BL, BG, D))
    A.label(F)
    A("""s_lshl_b32 s31, s91, 12
    s_add_u32 s31, s31, %d
    v_mov_b32 v7, s31
    s_mov_b64 exec, 1""" % BL)
    A.label(L2)
    A("""buffer_load_dword v90, v7, s[12:15], s18 offen sc1
    s_add_u32 s30, s30, 1
    s_waitcnt vmcnt(0)
    v_readfirstlane_b32 s92, v90
    s_xor_b32 s31, s92, %s
    s_cmp_le_u32 s31, 1
    s_cbranch_scc1 %s
    s_cmp_lt_u32 s30, %d
    s_cbranch_scc1 %s""" % (TOK, D, SPIN, L2))
    A.label(D)
    A("s_mov_b64 exec, -1")

def gen_loader(A, hA, hB, iA, iB, opt):
    A("""s_sub_u32 s6, s5, 4
    s_and_b32 s7, s6, 1
    s_lshl_b32 s26, s7, 12
    s_lshr_b32 s19, s4, 3
    s_lshl_b32 s18, s3, 2
    s_add_u32 s19, s19, s18
    s_and_b32 s20, s4, 7
    s_cmp_ge_u32 s4, 14
    s_cselect_b32 s21, 1, 0
    s_cselect_b32 s22, 14, 0
    s_sub_u32 s22, s4, s22
    s_lshl_b32 s18, s3, 1
    s_add_u32 s21, s21, s18
    s_cmp_ge_u32 s6, 2
    s_cbranch_scc1 L_aload
    v_lshlrev_b32 v3, 4, v0
    s_lshl_b32 s16, s2, 13
    s_add_u32 s16, s16, s26
    s_memrealtime s[60:61]
    s_getreg_b32 s59, hwreg(HW_REG_XCC_ID, 0, 4)
    s_lshl_b32 s17, s3, 2
    s_add_u32 s17, s17, 4
    s_add_u32 s59, s59, 1
    v_mul_u32_u24 v6, s17, v0
    v_lshlrev_b32 v5, 2, v0
    s_waitcnt lgkmcnt(0)""")
    srd(A, 8, 36, 0x200000); srd(A, 32, 50, 256)
    A("""s_or_b32 s60, s60, 2
    s_and_b32 s60, s60, -2
    s_add_u32 s31, s4, s7
    s_cmp_lg_u32 s31, 0
    s_cbranch_scc1 L_notok
    v_mov_b32 v104, s59
    v_writelane_b32 v104, s60, 0
    s_cmp_eq_u32 s2, 0
    s_cselect_b32 exec_lo, 3, 2
    s_mov_b32 exec_hi, 0
    buffer_store_dword v104, v6, s[32:35], 0 offen sc1
    s_mov_b64 exec, -1""")
    A.label("L_notok")
    for r in range(4): A("buffer_load_dwordx4 %s, v3, s[8:11], s16 offen offset:%d" % (v(16 + 4 * r, 4), 1024 * r))
    A("s_cmp_lg_u32 s7, 0\ns_cbranch_scc1 L_nodbg\nbuffer_load_dword v104, v5, s[32:35], 0 offen sc1")
    A.label("L_nodbg")
    srd(A, 12, 52, WEND)
    A("""s_mov_b32 s24, 0x3f803f80
    s_mov_b32 s90, %s
    s_mul_i32 s18, s7, %d
    s_add_u32 s18, s18, %d
    v_lshl_add_u32 v8, v0, 5, s18
    v_bfe_u32 v9, v0, 2, 2
    v_mul_u32_u24 v9, %d, v9
    v_and_b32 v10, 3, v0
    v_lshl_add_u32 v9, v10, 3, v9
    v_lshrrev_b32 v11, 4, v0
    v_lshl_add_u32 v9, v11, 5, v9
    s_lshl_b32 s18, s7, 10
    s_add_u32 s18, s18, %d
    v_add_u32 v9, s18, v9
    v_lshrrev_b32 v11, 2, v0
    v_lshlrev_b32 v11, 14, v11
    v_lshl_add_u32 v10, v10, 4, v11
    s_lshl_b32 s16, s7, 21
    s_lshl_b32 s18, s2, 6
    s_add_u32 s16, s16, s18
    s_add_u32 s16, s16, %d
    s_lshl_b32 s18, s7, 2
    s_add_u32 s18, s18, %d
    v_mov_b32 v12, s18
    v_xor_b32 v13, 4, v12
    s_barrier""" % (f32(1.0 / 512), 4 * TP, R0, TP, R0, UX, LSW))
    for k in range(8): A("v_mov_b32 v%d, 0" % (96 + k))
    A("s_cmp_lg_u32 s7, 0\ns_cbranch_scc1 L_w0\ns_waitcnt vmcnt(1)\ns_branch L_w1")
    A.label("L_w0"); A("s_waitcnt vmcnt(0)"); A.label("L_w1")
    A.stamp(1)
    for e in range(4):
        for r in range(4):
            x = 16 + 4 * r + e
            A("v_dot2_f32_bf16 v%d, v%d, s24, v%d" % (96 + r, x, 96 + r))
            A("v_dot2_f32_bf16 v%d, v%d, v%d, v%d" % (100 + r, x, x, 100 + r))
    for a in (96, 98, 100, 102): A("v_permlane32_swap_b32 v%d, v%d" % (a, a + 1))
    for a in (96, 98, 100, 102): A("v_add_f32 v%d, v%d, v%d" % (a, a, a + 1))
    A("v_permlane16_swap_b32 v96, v98\nv_permlane16_swap_b32 v100, v102\nv_add_f32 v96, v96, v98\nv_add_f32 v100, v100, v102")
    for sh in (8, 4, 2, 1):
        for a in (96, 100): A("v_add_f32_dpp v%d, v%d, v%d row_ror:%d row_mask:0xf bank_mask:0xf" % (a, a, a, sh))
    for r in range(4):
        for e in range(4):
            x = 16 + 4 * r + e; t = 32 + 8 * r + 2 * e
            A("v_lshlrev_b32 v%d, 16, v%d\nv_and_b32 v%d, 0xffff0000, v%d" % (t, x, t + 1, x))
            A("v_mov_b32 v%d, v%d" % (64 + 8 * r + 2 * e + 1, x))
    rowstats(A, 96, 100, 512, 97, 98, 99)
    A("v_mul_f32 v98, -v98, v99")
    for r in range(4):
        ln = 16 * [0, 2, 1, 3][r]
        A("v_readlane_b32 s%d, v98, %d\nv_readlane_b32 s%d, v99, %d" % (80 + 2 * r, ln, 81 + 2 * r, ln))
    for r in range(4):
        for e in range(4):
            t = 32 + 8 * r + 2 * e
            A("v_pk_fma_f32 %s, %s, %s, %s op_sel:[0,1,0] op_sel_hi:[1,1,0]" % (v(t, 2), v(t, 2), s(80 + 2 * r, 2), s(80 + 2 * r, 2)))
        for e in range(4):
            t = 32 + 8 * r + 2 * e
            A("v_cvt_pk_f16_f32 v%d, v%d, v%d" % (64 + 8 * r + 2 * e, t, t + 1))
        A("ds_write_b128 v8, %s offset:%d\nds_write_b128 v8, %s offset:%d" % (v(64 + 8 * r, 4), r * TP, v(68 + 8 * r, 4), r * TP + 16))
    pairsync(A, 1, 12, 13, 14)
    A.stamp(2)
    for j in range(8):
        A("ds_read_b64_tr_b16 %s, v9 offset:%d\nds_read_b64_tr_b16 %s, v9 offset:%d" % (v(16 + 4 * j, 2), 128 * j, v(18 + 4 * j, 2), 128 * j + 4 * TP))
    for j in range(8):
        A("s_waitcnt lgkmcnt(%d)" % (14 - 2 * j))
        A("buffer_store_dwordx4 %s, v10, s[12:15], s16 offen sc1" % v(16 + 4 * j, 4))
        if j < 7: A("s_add_u32 s16, s16, 0x40000")
    A("""s_cmp_lg_u32 s7, 0
    s_cbranch_scc1 L_tokd
    s_mov_b32 s30, 0
    s_add_u32 s17, s3, 1
    s_waitcnt vmcnt(8)""")
    A.label("L_tok")
    A("""v_readlane_b32 %s, v104, 0
    v_readlane_b32 s91, v104, s17
    s_min_u32 s31, %s, s91
    s_cmp_lg_u32 s31, 0
    s_cbranch_scc1 L_tokx
    buffer_load_dword v104, v5, s[32:35], 0 offen sc1
    s_add_u32 s30, s30, 1
    s_waitcnt vmcnt(0)
    s_cmp_lt_u32 s30, %d
    s_cbranch_scc1 L_tok""" % (TOK, TOK, SPIN))
    A.label("L_tokx")
    A("""s_cmp_lg_u32 s91, s59
    s_cselect_b32 s91, 1, 0
    s_or_b32 s31, s91, %s
    v_mov_b32 v104, s31
    v_mov_b32 v7, %d
    ds_write_b32 v7, v104""" % (TOK, TOKW))
    A.label("L_tokd")
    A("s_waitcnt vmcnt(0)")
    pairsync(A, 2, 12, 13, 14)
    A("""s_cmp_lg_u32 s7, 0
    s_cbranch_scc1 L_nof1
    s_lshl_b32 s18, s2, 4
    v_mov_b32 v7, %d
    s_mov_b64 exec, 1
    buffer_store_dword v104, v7, s[12:15], s18 offen sc1
    s_mov_b64 exec, -1""" % F1)
    A.label("L_nof1")
    A("""v_mov_b32 v7, %d
    ds_read_b32 v104, v7
    v_mov_b32 v8, 0
    v_mov_b32 v9, 0
    s_mul_i32 s18, s7, 8704
    s_add_u32 s18, s18, %d
    v_lshl_add_u32 v7, v0, 3, s18
    ds_write_b64 v7, v[8:9]
    v_lshlrev_b32 v8, 6, v0
    s_lshl_b32 s16, s3, 5
    s_add_u32 s16, s16, s4
    s_lshl_b32 s16, s16, 14
    s_lshl_b32 s18, s7, 13
    s_add_u32 s16, s16, s18
    s_add_u32 s16, s16, %d
    s_add_u32 s17, s16, 3072
    s_lshl_b32 s23, s7, 11
    s_waitcnt lgkmcnt(1)
    v_readfirstlane_b32 s31, v104
    s_and_b32 s91, s31, 1
    s_and_b32 %s, s31, -2""" % (TOKW, R0, UX, TOK))
    A.stamp(3)
    allsync(A, F1, 0)
    A.stamp(4)
    for q in range(4):
        A("s_add_u32 m0, s23, %d" % (R0 + (q & 1) * 8704 + (512 if q < 2 else 4608)))
        A("buffer_load_dwordx4 v8, s[12:15], s16 offen lds\nbuffer_load_dwordx4 v8, s[12:15], s17 offen offset:1024 lds")
        if q < 3: A("s_add_u32 s16, s16, 16\ns_add_u32 s17, s17, 16")
    A("s_and_b32 s1, s92, 1\ns_lshl_b32 s94, s1, 1\ns_add_u32 s94, s94, 2")
    def trlane():
        A("""v_lshrrev_b32 v1, 3, v0
        v_and_b32 v2, 6, v1
        v_and_b32 v3, 7, v0
        v_xor_b32 v2, v2, v3
        v_lshlrev_b32 v2, 4, v2""")
    trlane()
    A("s_waitcnt vmcnt(0) lgkmcnt(0)")
    A.stamp(5)
    A("s_barrier")
    bars = ["B2", "P1"] + [(1, s_) for s_ in range(8)] + ["E1", "P2"] + [(2, s_) for s_ in range(8)] + ["E2", "X3", "P3"] + [(3, s_) for s_ in range(16)] + ["E3", "P4"] + [(4, s_) for s_ in range(28)]
    def trvoff(pitch):
        A("v_mul_u32_u24 v8, %d, v1\nv_add_u32 v8, v8, v2" % pitch)
        for b in range(1, 4): A("v_add_u32 v%d, %d, v8" % (8 + b, b * (8 * pitch - 1024)))
    vm = VM(); last = {}
    step = {1: 64 * 4096, 2: 2048, 3: 1024, 4: 2048}
    def issueB(b):
        for (bb, g, s_) in iB:
            if bb != b: continue
            A("s_add_u32 m0, s26, %d" % (hB[g][s_] * 8192))
            for k in range(4):
                A("buffer_load_dwordx4 v%d, s[12:15], s25 offen offset:%d lds" % (8 + (k if g in (1, 3) else k >> 1), 1024 * k))
            A("s_add_u32 s25, s25, %d" % step[g])
            last[(g, s_)] = vm.add(4)
    for b in bars:
        if b == "P1":
            trvoff(4096)
            A("""s_lshl_b32 s25, s7, 17
            s_lshl_b32 s18, s19, 7
            s_add_u32 s25, s25, s18""")
            A.stamp(6); allsync(A, F2, 1); A.stamp(7)
        elif b in ("P2", "P4"):
            C = 512 if b == "P2" else 1792
            A("""v_lshlrev_b32 v8, 4, v0
            v_add_u32 v9, %d, v8
            s_lshl_b32 s25, s19, 1
            s_add_u32 s25, s25, s7
            s_mul_i32 s25, s25, %d
            s_add_u32 s25, s25, %d
""" % (32 * C - 2048, 64 * C, H1 if b == "P2" else H3))
            if b == "P2":
                A("""s_lshl_b32 s18, s19, 7
                s_add_u32 s18, s18, %d
                v_lshl_add_u32 v7, v0, 2, s18
                s_lshl_b32 s18, s19, 9
                s_add_u32 s18, s18, %d
                v_lshl_add_u32 v6, v0, 4, s18
                s_and_b32 s18, s19, 3
                s_cmp_eq_u32 s18, 0
                s_cselect_b32 s16, 0xffff, 0
                s_cmp_eq_u32 s18, 3
                s_cselect_b32 s17, 0xffff0000, 0
                s_cmp_eq_u32 s1, 0
                s_cselect_b64 vcc, s[16:17], -1
                v_cndmask_b32 v7, v7, v6, vcc
                s_mov_b64 s[16:17], -1
                s_cmp_eq_u32 s19, 0
                s_cselect_b32 s16, 0xffff0000, s16
                s_cmp_eq_u32 s19, 31
                s_cselect_b32 s17, 0xffff, s17""" % (FL[3] - 64, FG[3] - 256))
                A.stamp(8); poll(A, 7, "0", 1, "s[16:17]"); A.stamp(9)
            else:
                A.label("L_b_p4")
                A("""s_lshl_b32 s18, s19, 5
                v_add_u32 v7, s18, v0
                v_lshlrev_b32 v7, s94, v7
                s_cmp_eq_u32 s1, 0
                s_movk_i32 s18, %d
                s_cselect_b32 s18, %d, s18
                s_lshl_b32 s18, s18, 12""" % (FG[5] >> 12, FL[5] >> 12))
                A.stamp(12); poll(A, 7, "s18", 1, "0xfffffff"); A.stamp(13)
        elif b == "P3":
            A("v_lshlrev_b32 v8, 4, v0")
            for k in range(1, 4): A("v_add_u32 v%d, %d, v8" % (8 + k, k * (16384 - 1024)))
            A("""s_lshl_b32 s25, s21, 1
            s_add_u32 s25, s25, s7
            s_lshl_b32 s25, s25, 16
            s_add_u32 s25, s25, %d
            s_lshl_b32 s18, s21, 6
            v_add_u32 v7, s18, v0
            v_lshlrev_b32 v7, s94, v7
            s_cmp_eq_u32 s1, 0
            s_movk_i32 s18, %d
            s_cselect_b32 s18, %d, s18
            s_lshl_b32 s18, s18, 12""" % (X1, FG[4] >> 12, FL[4] >> 12))
            A.stamp(10); poll(A, 7, "s18", 1); A.stamp(11)
        else:
            if isinstance(b, tuple): vm.wait(A, last[b])
            A("s_barrier")
            if b == "E2":
                A("s_cmp_lt_u32 s4, 28\ns_cbranch_scc1 L_b_g3")
                A("""v_lshlrev_b32 v8, 4, v0
                v_add_u32 v9, %d, v8
                s_lshl_b32 s25, s19, 1
                s_add_u32 s25, s25, s7
                s_mul_i32 s25, s25, %d
                s_add_u32 s25, s25, %d
                s_branch L_b_p4""" % (32 * 1792 - 2048, 64 * 1792, H3))
                A.label("L_b_g3")
        issueB(b)
    A.pend(0)
    A("s_endpgm")
    A.label("L_aload")
    A("s_barrier")
    trlane()
    vm = VM(); last = {}
    wp = {1: 40, 2: 42, 3: 44, 4: 46}; wsz = {1: 0x80000, 2: 0x80000, 3: 0x1c0000, 4: 0x1c0000}
    cur = [None]
    soff = {1: 54, 2: 55, 3: 56, 4: 57}
    A("""s_lshl_b32 s54, s7, 15
    s_lshl_b32 s18, s20, 7
    s_add_u32 s54, s54, s18
    s_mov_b32 s55, s54
    s_mov_b32 s57, s54
    s_lshl_b32 s56, s7, 7
    s_lshl_b32 s18, s22, 8
    s_add_u32 s56, s56, s18""")
    trvoff(1024)
    A("v_mul_u32_u24 v12, 3584, v1\nv_add_u32 v12, v12, v2")
    for b in range(1, 4): A("v_add_u32 v%d, %d, v12" % (12 + b, b * (8 * 3584 - 1024)))
    def setw(g):
        if cur[0] != g: srd(A, 8, wp[g], wsz[g]); cur[0] = g
    def oneA(g, s_):
        setw(g)
        A("s_add_u32 m0, s26, %d" % (hA[g][s_] * 8192))
        for k in range(4):
            A("buffer_load_dwordx4 v%d, s[8:11], s%d offen offset:%d lds" % ((12 if g == 3 else 8) + k, soff[g], 1024 * k))
        A("s_add_u32 s%d, s%d, %d" % (soff[g], soff[g], 32 * 3584 if g == 3 else 65536))
        last[(g, s_)] = vm.add(4)
    def issueA(b):
        for (bb, g, s_) in iA:
            if bb == b: oneA(g, s_)
    def touch(g):
        setw(g)
        n = wsz[g] // 128 // 64
        A("s_lshl_b32 s18, s4, 1\ns_add_u32 s18, s18, s7\ns_mul_i32 s18, s18, %d\nv_lshlrev_b32 v7, 7, v0" % (n * 128))
        k = 0
        while k < n:
            if n - k < 64: A("s_mov_b64 exec, 0x%x" % ((1 << (n - k)) - 1))
            A("buffer_load_dword v20, v7, s[8:11], s18 offen\ns_add_u32 s18, s18, 8192"); vm.add(1)
            k += 64
        A("s_mov_b64 exec, -1")
    A("s_waitcnt lgkmcnt(0)")
    srd(A, 12, 52, WEND)
    issueA("B0")
    tch = opt.get("touch", {"E1": (4,)})
    for g in tch.get("B0", ()): touch(g)
    for b in ["B1"] + bars:
        if b in ("P1", "P2", "P3", "P4"): continue
        if b == "B2": vm.wait(A, last[(1, 7)])
        elif b == "X3": vm.wait(A, last[(3, 15)])
        elif isinstance(b, tuple) and b[0] in (2, 4): vm.wait(A, last[b])
        A("s_barrier")
        if b == "E2":
            A("s_cmp_lt_u32 s4, 28\ns_cbranch_scc1 L_a_g3")
            sv = (vm.n, dict(last), cur[0])
            for s_ in range(12): oneA(4, s_)
            A("s_waitcnt vmcnt(0)\ns_branch L_a_g4")
            vm.n, last, cur[0] = sv[0], sv[1], sv[2]
            A.label("L_a_g3")
        if b == "E3": A.label("L_a_g4")
        issueA(b)
        for g in tch.get(b, ()): touch(g)
    A.pend(0)
    A("s_endpgm")

FA, FB, ACC, CS, PS, RES, HF = 32, 64, 96, 160, 176, 208, 224
def tr_bases(A, dst, nu, ubase_s, extra_s=None):
    A("""v_lshrrev_b32 v1, 2, v0
    v_lshlrev_b32 v1, 7, v1
    v_and_b32 v2, 3, v0
    v_lshl_add_u32 v1, v2, 3, v1
    v_bfe_u32 v2, v0, 3, 2""")
    if ubase_s: A("v_xor_b32 v2, %s, v2" % ubase_s)
    if extra_s: A("v_add_u32 v1, %s, v1" % extra_s)
    A("v_lshl_add_u32 v%d, v2, 5, v1" % dst)
    for k in range(1, nu): A("v_xor_b32 v%d, %d, v%d" % (dst + k, 32 * k, dst))
    for rg in (1, 2):
        for k in range(nu): A("v_add_u32 v%d, 0x%x, v%d" % (dst + rg * nu + k, rg << 16, dst + k))

def gemm_main(A, g, hA, hB, init):
    F = 4 if g == 3 else 2
    SPS = 1 if g == 3 else 2
    nsteps = NS[g] * SPS
    vRA, vRB = 8, 20
    btr = g == 1
    def off(h, o):
        a = h * 8192 + o
        return a >> 16, a & 0xffff
    def reads(t):
        st, ks = t // SPS, t % SPS
        b = t & 1; la = []; lb = []
        for fn in range(F):
            d = FB + (b * F + fn) * 4
            if btr:
                for hh in range(2):
                    rg, o = off(hB[g][st], 4096 * ks + 2048 * hh)
                    lb.append("ds_read_b64_tr_b16 %s, v%d offset:%d" % (v(d + 2 * hh, 2), vRB + rg * 2 + fn, o))
            else:
                rg, o = off(hB[g][st], (1024 * fn) if g == 3 else (1024 * ks + 2048 * fn))
                lb.append("ds_read_b128 %s, v%d offset:%d" % (v(d, 4), vRB + rg, o))
        for fm in range(F):
            d = FA + (b * F + fm) * 4
            for hh in range(2):
                rg, o = off(hA[g][st], 4096 * ks + 2048 * hh)
                la.append("ds_read_b64_tr_b16 %s, v%d offset:%d" % (v(d + 2 * hh, 2), vRA + rg * F + fm, o))
        return lb + la
    def mfmas(t):
        b = t & 1; M = []
        if g == 1:
            for fn in range(F):
                fb = v(FB + (b * F + fn) * 4, 4)
                M.append("v_mfma_f32_16x16x32_bf16 %s, %s, %s, %s" % (v(PS + 4 * fn, 4), v(PS + 16, 4), fb, "0" if t == 0 else v(PS + 4 * fn, 4)))
                M.append("v_mfma_f32_16x16x32_bf16 %s, %s, %s, %s" % (v(PS + 8 + 4 * fn, 4), fb, fb, "0" if t == 0 else v(PS + 8 + 4 * fn, 4)))
        for fm in range(F):
            for fn in range(F):
                c = ACC + (fm * F + fn) * 4
                c0 = v(RES + (fm * F + fn) * 4, 4) if init else "0"
                M.append("v_mfma_f32_16x16x32_bf16 %s, %s, %s, %s" % (v(c, 4), v(FA + (b * F + fm) * 4, 4), v(FB + (b * F + fn) * 4, 4), c0 if t == 0 else v(c, 4)))
        return M
    A("s_barrier")
    for r in reads(0): A(r)
    hooks = init_hooks.get(g)
    if hooks: hooks(A)
    for t in range(nsteps):
        if (t + 1 < nsteps) and ((t + 1) % SPS == 0): A("s_barrier")
        R = reads(t + 1) if t + 1 < nsteps else []
        M = mfmas(t)
        A("s_waitcnt lgkmcnt(0)")
        for i, m in enumerate(M):
            A(m)
            for r in R[2 * i:2 * i + 2]: A(r)
        assert 2 * len(M) >= len(R)
init_hooks = {}

def colsum(A, g, hA):
    F = 4 if g == 3 else 2
    SPS = 1 if g == 3 else 2
    for i in range(4): A("v_mov_b32 v%d, 0x3f803f80" % (PS + 16 + i))
    n = NS[g] * SPS
    def rd(t):
        for fm in range(F):
            for hh in range(2):
                a = hA[g][t // SPS] * 8192 + 4096 * (t % SPS) + 2048 * hh
                A("ds_read_b64_tr_b16 %s, v%d offset:%d" % (v(FA + ((t & 1) * F + fm) * 4 + 2 * hh, 2), 8 + (a >> 16) * F + fm, a & 0xffff))
    rd(0)
    for t in range(n):
        if t + 1 < n: rd(t + 1); A("s_waitcnt lgkmcnt(%d)" % (2 * F))
        else: A("s_waitcnt lgkmcnt(0)")
        for fm in range(F):
            A("v_mfma_f32_16x16x32_bf16 %s, %s, %s, %s" % (v(CS + 4 * fm, 4), v(FA + ((t & 1) * F + fm) * 4, 4), v(PS + 16, 4), "0" if t == 0 else v(CS + 4 * fm, 4)))

def gen_compute(A, hA, hB, opt):
    A("""s_lshr_b32 s6, s5, 1
    s_and_b32 s7, s5, 1
    s_lshl_b32 s16, s3, 6
    s_lshl_b32 s17, s4, 1
    s_add_u32 s16, s16, s17
    s_add_u32 s16, s16, s6
    s_lshl_b32 s25, s16, 8
    s_lshl_b32 s17, s16, 1
    v_lshl_add_u32 v2, s7, 6, v0
    v_lshlrev_b32 v3, 1, v2
    v_xor_b32 v4, 128, v3
    v_mov_b32 v6, 0
    s_waitcnt lgkmcnt(0)""")
    for i, r in enumerate((8, 9, 10, 11)):
        srd(A, 8, 38 + 2 * i, 0x20000)
        A("buffer_load_ushort v%d, v3, s[8:11], s25 offen" % r)
        if i >= 2: A("buffer_load_ushort v%d, v4, s[8:11], s25 offen" % (r + 2))
    srd(A, 8, 46, 1024); A("buffer_load_ushort v15, v6, s[8:11], s17 offen")
    srd(A, 8, 48, 1024); A("buffer_load_ushort v72, v6, s[8:11], s17 offen")
    srd(A, 12, 52, WEND)
    A("""s_barrier
    s_mul_i32 s26, s6, 33280
    s_add_u32 s26, s26, %d
    v_lshl_add_u32 v5, v2, 2, s26
    v_and_b32 v6, 15, v0
    v_sub_u32 v6, 15, v6
    v_bfe_u32 v7, v0, 4, 2
    s_lshl_b32 s18, s5, 2
    s_add_u32 s18, s18, %d
    v_mov_b32 v73, s18
    v_xor_b32 v74, 4, v73
    s_cmp_eq_u32 s7, 0""" % (TB, SYNCW))
    for tt in range(4):
        A("s_movk_i32 s28, %d\ns_cselect_b32 s28, %d, s28" % (256 * (tt + 4), 256 * tt))
        A("s_cselect_b32 s29, %d, %d" % (ZSH[tt], ZSH[tt + 4]))
        A("s_cselect_b32 s30, %d, %d" % (ZRB[tt], ZRB[tt + 4]))
        d = 66 + tt
        A("v_add_u32 v%d, s28, v6\nv_cvt_f32_u32 v%d, v%d" % (d, d, d))
        bf16r(A, d, d)
        A("v_cvt_u32_f32 v%d, v%d\nv_subrev_u32 v%d, s28, v%d\nv_lshrrev_b32 v%d, s29, v%d\nv_add_u32 v%d, s30, v%d" % ((d,) * 8))
        A("v_mul_u32_u24 v%d, %d, v%d\nv_lshl_add_u32 v%d, v7, 4, v%d\nv_add_u32 v%d, s26, v%d" % (d, RP, d, d, d, d, d))
    A("""v_add_u32 v70, 47, v6
    v_mul_u32_u24 v70, %d, v70
    v_lshl_add_u32 v70, v7, 4, v70
    v_add_u32 v70, s26, v70
    v_and_b32 v71, 15, v0
    v_lshlrev_b32 v71, 5, v71
    v_lshl_add_u32 v71, v7, 3, v71
    s_waitcnt vmcnt(0)
    v_lshlrev_b32 v15, 16, v15
    v_lshlrev_b32 v72, 16, v72
    s_nop 0
    v_readfirstlane_b32 s24, v15
    v_readfirstlane_b32 s23, v72""" % RP)
    A.stamp(1)
    gen_kgen_tables(A, 5)
    pairsync(A, 1, 73, 74, 75)
    A.stamp(2)
    for ks in range(8): A("ds_read_b128 %s, v70 offset:%d" % (v(16 + 4 * ks, 4), 64 * ks))
    def rdA(tt):
        for ks in range(8): A("ds_read_b128 %s, v%d offset:%d" % (v(80 + 32 * (tt & 1) + 4 * ks, 4), 66 + tt, 64 * ks))
    rdA(0)
    for tt in range(4):
        if tt < 3: rdA(tt + 1)
        for ks in range(8):
            A("s_waitcnt lgkmcnt(%d)" % ((15 if tt < 3 else 7) - ks))
            A("v_mfma_f32_16x16x32_f16 %s, %s, %s, %s" % (v(48 + 4 * tt, 4), v(80 + 32 * (tt & 1) + 4 * ks, 4), v(16 + 4 * ks, 4), "0" if ks == 0 else v(48 + 4 * tt, 4)))
    A("v_readfirstlane_b32 s26, v14\ns_mul_i32 s10, s6, 33280\ns_add_u32 s10, s10, %d" % TB)
    pairsync(A, 2, 73, 74, 75)
    A("""s_mov_b32 s27, s26
    s_lshl_b32 s18, s7, 11
    s_sub_u32 s18, s10, s18
    v_add_u32 v76, s18, v71
    v_mov_b32 v8, 0
    v_and_b32 v9, 15, v0
    s_mul_i32 s18, s7, 4160
    s_add_u32 s18, s18, s10
    v_lshl_add_u32 v9, v9, 2, s18""")
    for tt in range(4):
        r = 48 + 4 * tt; o = 3584 - 512 * tt
        A("v_cvt_pk_f16_f32 v16, v%d, v%d\nv_cvt_pk_f16_f32 v17, v%d, v%d\nv_cvt_pk_f16_f32 v18, v%d, v%d" % (r, r + 1, r + 2, r + 3, r + 1, r + 2))
        A("ds_write_b64 v76, v[16:17] offset:%d" % (4160 + o))
        A("ds_write_b32 v76, v18 offset:%d" % o)
        A("ds_write_b16_d16_hi v76, v17 offset:%d" % (o + 4))
        if tt == 3: A("v_subrev_u32 v77, 2, v76\nds_write_b16 v77, v16 offset:%d" % o)
        else: A("ds_write_b16 v76, v16 offset:%d" % (o - 2))
    A("""ds_write_b32 v9, v8 offset:4096
    v_mov_b32 v9, s10
    ds_write_b16 v9, v8 offset:4094
    v_and_b32 v6, 15, v0
    v_and_b32 v10, 1, v0
    v_mul_u32_u24 v10, 4160, v10
    v_lshl_add_u32 v10, v7, 4, v10
    v_bfe_u32 v11, v0, 1, 3
    v_lshlrev_b32 v11, 2, v11
    v_sub_u32 v10, v10, v11
    s_lshl_b32 s18, s7, 6
    s_sub_u32 s29, s10, s18
    s_add_u32 s29, s29, %d
    v_add_u32 v12, s29, v10
    v_subrev_u32 v13, 1024, v12
    v_subrev_u32 v14, 2048, v12
    v_subrev_u32 v15, 3072, v12
    s_mul_i32 s21, s6, 8704
    s_add_u32 s21, s21, %d
    s_sub_u32 s28, s21, s18
    s_add_u32 s28, s28, 96
    v_lshlrev_b32 v10, 5, v6
    v_lshl_add_u32 v11, v7, 4, v10
    v_add_u32 v11, s28, v11
    v_lshl_add_u32 v10, v7, 3, v10
    s_lshl_b32 s18, s7, 11
    s_add_u32 s21, s21, s18
    v_mov_b32 v8, v73
    v_mov_b32 v9, v74
    s_waitcnt lgkmcnt(0)""" % (4060 - 64 * 14, R0))
    A.stamp(3)
    A("s_barrier")
    A("v_mov_b32 v1, %d\nds_read_b32 v1, v1\ns_waitcnt lgkmcnt(0)\nv_readfirstlane_b32 %s, v1\ns_and_b32 %s, %s, -2" % (TOKW, TOK, TOK, TOK))
    A.stamp(4)
    conv_main(A, 12, 11, 32, 64, 16)
    A.stamp(5)
    A("""s_lshl_b32 s18, s5, 12
    s_add_u32 s18, s18, %d
    v_lshl_add_u32 v5, v0, 4, s18
    v_xor_b32 v6, 4096, v5
    v_add_u32 v7, s21, v10
    s_lshl_b32 s28, s16, 12
    s_lshl_b32 s29, s7, 11
    s_add_u32 s28, s28, s29
    s_nop 4
    s_cmp_eq_u32 s7, 0
    s_cbranch_scc1 L_cv_a""" % RED)
    for t in range(4): A("ds_write_b128 v5, %s offset:%d" % (v(32 + 4 * t, 4), 1024 * t))
    for k in range(16): A("v_mov_b32 v%d, v%d" % (16 + k, 48 + k))
    A("s_branch L_cv_b")
    A.label("L_cv_a")
    for t in range(4): A("ds_write_b128 v5, %s offset:%d" % (v(48 + 4 * t, 4), 1024 * t))
    for k in range(16): A("v_mov_b32 v%d, v%d" % (16 + k, 32 + k))
    A.label("L_cv_b")
    for t in range(4):
        A("ds_read_b64 %s, v7 offset:%d" % (v(80 + 2 * t, 2), 4608 + 512 * t))
        A("ds_read_b64 %s, v7 offset:%d" % (v(88 + 2 * t, 2), 512 + 512 * t))
    pairsync(A, 3, 8, 9, 100)
    for t in range(4): A("ds_read_b128 %s, v6 offset:%d" % (v(64 + 4 * t, 4), 1024 * t))
    for t in range(4):
        A("s_waitcnt lgkmcnt(%d)" % (3 - t))
        for h in range(2):
            r = 16 + 4 * t + 2 * h; x = 80 + 2 * t + h; u = 88 + 2 * t + h
            A("v_pk_add_f32 %s, %s, %s" % (v(r, 2), v(r, 2), v(64 + 4 * t + 2 * h, 2)))
            A("v_lshlrev_b32 v96, 16, v%d\nv_and_b32 v97, 0xffff0000, v%d" % (x, x))
            A("v_pk_fma_f32 %s, %s, s[26:27], v[96:97]" % (v(r, 2), v(r, 2)))
            A("v_fma_mix_f32 v%d, v%d, s23, v%d op_sel_hi:[1,0,0]" % (r, u, r))
            A("v_fma_mix_f32 v%d, v%d, s23, v%d op_sel:[1,0,0] op_sel_hi:[1,0,0]" % (r + 1, u, r + 1))
            A("v_cvt_pk_bf16_f32 v%d, v%d, v%d" % (98 + 2 * t + h, r, r + 1))
        A("buffer_store_dwordx2 %s, v10, s[12:15], s28 offen offset:%d sc1" % (v(98 + 2 * t, 2), 512 * t))
    A.stamp(6)
    A("""v_mov_b32 v1, %d
    v_mov_b32 v2, 1
    s_mov_b64 exec, 1
    s_waitcnt vmcnt(0)
    ds_add_rtn_u32 v2, v1, v2
    v_mov_b32 v1, %d
    s_lshl_b32 s18, s2, 4
    s_waitcnt lgkmcnt(0)
    v_readfirstlane_b32 s19, v2
    v_mov_b32 v2, %s
    s_cmp_lg_u32 s19, 3
    s_cbranch_scc1 L_nof2
    buffer_store_dword v2, v1, s[12:15], s18 offen sc1""" % (CNTW, F2, TOK))
    A.label("L_nof2")
    A("s_mov_b64 exec, -1")
    A.stamp(7)
    A("""s_and_b32 s21, s5, 1
    s_lshr_b32 s22, s5, 1
    s_lshr_b32 s19, s4, 3
    s_lshl_b32 s18, s3, 2
    s_add_u32 s19, s19, s18
    s_and_b32 s20, s4, 7
    s_lshl_b32 s29, s19, 6
    s_lshl_b32 s18, s22, 5
    s_add_u32 s29, s29, s18
    s_lshl_b32 s17, s20, 1
    s_add_u32 s17, s17, s21
    s_lshl_b32 s16, s29, 10
    s_lshl_b32 s18, s17, 10
    s_add_u32 s16, s16, s18
    s_lshl_b32 s24, s21, 1
    s_lshl_b32 s25, s22, 1
    s_lshl_b32 s23, s19, 5
    s_lshl_b32 s18, s22, 4
    s_add_u32 s23, s23, s18
    s_add_u32 s23, s23, s17
    s_lshl_b32 s23, s23, 2
    v_lshrrev_b32 v4, 4, v0
    v_lshlrev_b32 v5, 4, v0
    v_and_b32 v7, 15, v0
    s_mov_b32 s90, %s""" % f32(1.0 / 512))
    tr_bases(A, 8, 2, "s24")
    tr_bases(A, 20, 2, "s25")
    A("s_barrier")
    colsum(A, 1, hA)
    A.stamp(8)
    gemm_main(A, 1, hA, hB, False)
    assert hB[1] == list(range(8, 16))
    A("s_lshl_b32 s18, s17, 12\ns_add_u32 s18, s18, 65536\nv_add_u32 v1, s18, v20\nv_add_u32 v2, s18, v21")
    for fn in range(2):
        for hh in range(2): A("ds_read_b64_tr_b16 %s, v%d offset:%d" % (v(HF + 4 * fn + 2 * hh, 2), 1 + fn, 2048 * hh))
    SA, GA, Tm = PS, PS + 8, FA
    A("""v_and_b32 v3, 3, v0
    v_lshrrev_b32 v6, 2, v7
    v_cmp_eq_u32 s[40:41], 1, v3
    v_cmp_eq_u32 s[42:43], 2, v3
    v_cmp_eq_u32 s[44:45], 3, v3
    v_cmp_eq_u32 s[46:47], v6, v4
    s_waitcnt lgkmcnt(0)
    s_barrier""")
    A.stamp(9)
    for fn in range(2):
        g = GA + 4 * fn
        A("v_cndmask_b32 v%d, v%d, v%d, s[40:41]" % (g, g, g + 1))
        A("v_cndmask_b32 v%d, v%d, v%d, s[42:43]" % (g, g, g + 2))
        A("v_cndmask_b32 v%d, v%d, v%d, s[44:45]" % (g, g, g + 3))
        A("v_cndmask_b32 v%d, 0, v%d, s[46:47]" % (g, g))
        A("v_mov_b32 v%d, v%d" % (g + 1, g))
    for fn in range(2): A("v_permlane32_swap_b32 v%d, v%d" % (GA + 4 * fn, GA + 4 * fn + 1))
    for fn in range(2):
        g = GA + 4 * fn
        A("v_add_f32 v%d, v%d, v%d\nv_mov_b32 v%d, v%d" % (g, g, g + 1, g + 1, g))
    for fn in range(2): A("v_permlane16_swap_b32 v%d, v%d" % (GA + 4 * fn, GA + 4 * fn + 1))
    A("""s_lshr_b32 s24, s17, 2
    s_lshr_b32 s27, s24, 1
    s_add_u32 s27, s27, 1
    s_sub_u32 s18, 0, s27
    s_bitcmp1_b32 s24, 0
    s_cselect_b32 s27, s18, s27
    s_add_u32 s27, s27, s29
    s_lshl_b32 s33, s17, 10
    s_add_u32 s33, s33, %d""" % H1)
    for fn in range(2):
        g = GA + 4 * fn; sa = SA + 4 * fn
        A("v_add_f32 v%d, v%d, v%d" % (g, g, g + 1))
        rowstats(A, sa, g, 512, g + 1, sa + 2, sa + 3)
        A("v_sub_f32 v%d, v%d, v%d" % (sa, sa, sa + 2))
        A("v_mul_f32 v%d, v%d, v%d" % (g, g, sa + 3))
        A("v_mul_f32 v%d, v%d, v%d" % (sa, sa, sa + 3))
        A("v_mul_f32 v%d, v%d, v%d" % (g, g, sa + 3))
        bf16r(A, sa, sa); bf16r(A, g, g)
        A("v_add_f32 v%d, %s, v%d" % (g, f32(1e-5), g))
        A("v_fma_f32 v%d, -v%d, v%d, -v%d" % (sa, sa, g + 1, sa + 2))
        bf16r(A, g, g)
        A("v_sqrt_f32 v%d, v%d" % (g, g))
        bf16r(A, g, g)
        A("v_rcp_f32 v%d, v%d" % (g + 1, g))
        A("v_mul_f32 v%d, v%d, v%d" % (g + 1, g + 1, sa + 3))
        gelu_consts(A, g + 1, g + 2, g)
    for fn in range(2):
        g = GA + 4 * fn; sa = SA + 4 * fn
        o = Tm + 8 + 4 * fn
        gelu8(A, ACC + 4 * fn, ACC + 8 + 4 * fn, CS, sa, g + 2, g, Tm, o)
        A("""v_add_u32 v1, s27, v7
        v_add_u32 v1, %d, v1
        v_cmp_gt_u32 vcc, 2048, v1
        v_and_b32 v1, 2047, v1
        v_lshrrev_b32 v2, 4, v1
        v_and_b32 v1, 15, v1
        v_lshlrev_b32 v2, 14, v2
        v_lshl_add_u32 v2, v1, 4, v2
        v_lshl_add_u32 v2, v4, 8, v2""" % (16 * fn))
        for i in range(4): A("v_cndmask_b32 v%d, 0, v%d, vcc" % (o + i, o + i))
        A("buffer_store_dwordx4 %s, v2, s[12:15], s33 offen sc1" % v(o, 4))
    for fn in range(2):
        mu = SA + 4 * fn + 2
        A("v_mul_f32 v%d, -v%d, v%d" % (mu, mu, mu + 1))
        for i in range(4):
            h = HF + 4 * fn + i; t = RES + ((i >> 1) * 2 + fn) * 4 + 2 * (i & 1)
            A("v_lshlrev_b32 v%d, 16, v%d\nv_and_b32 v%d, 0xffff0000, v%d" % (t, h, t + 1, h))
            A("v_pk_fma_f32 %s, %s, %s, %s op_sel:[0,1,0] op_sel_hi:[1,1,0]" % (v(t, 2), v(t, 2), v(mu, 2), v(mu, 2)))
    setflag(A, 3, "s23")
    A("s_lshl_b32 s18, s22, 12\nv_add_u32 v20, s18, v5\nv_add_u32 v21, 0x10000, v20\nv_add_u32 v22, 0x20000, v20")
    A.stamp(10)
    gemm_main(A, 2, hA, hB, True)
    A("s_barrier")
    A("s_add_u32 s24, s16, %d\ns_add_u32 s27, s16, %d" % (X1, X1 + 16384))
    for fn in range(2):
        src = [ACC + 4 * fn, ACC + 4 * fn + 2, ACC + 8 + 4 * fn, ACC + 8 + 4 * fn + 2]
        for i in range(4): A("v_cvt_pk_bf16_f32 v%d, v%d, v%d" % (Tm + 16 + 4 * fn + i, src[i], src[i] + 1))
        A("buffer_store_dwordx4 %s, v5, s[12:15], %s offen sc1" % (v(Tm + 16 + 4 * fn, 4), "s24" if fn == 0 else "s27"))
        sm = Tm + 8 + 4 * fn
        A("v_pk_add_f32 %s, %s, %s" % (v(sm, 2), v(src[0], 2), v(src[1], 2)))
        A("v_pk_mul_f32 %s, %s, %s" % (v(sm + 2, 2), v(src[0], 2), v(src[0], 2)))
        A("v_pk_add_f32 %s, %s, %s" % (v(sm, 2), v(sm, 2), v(src[2], 2)))
        A("v_pk_fma_f32 %s, %s, %s, %s" % (v(sm + 2, 2), v(src[1], 2), v(src[1], 2), v(sm + 2, 2)))
        A("v_pk_add_f32 %s, %s, %s" % (v(sm, 2), v(sm, 2), v(src[3], 2)))
        A("v_pk_fma_f32 %s, %s, %s, %s" % (v(sm + 2, 2), v(src[2], 2), v(src[2], 2), v(sm + 2, 2)))
        A("v_add_f32 v%d, v%d, v%d" % (sm, sm, sm + 1))
        A("v_pk_fma_f32 %s, %s, %s, %s" % (v(sm + 2, 2), v(src[3], 2), v(src[3], 2), v(sm + 2, 2)))
        A("v_add_f32 v%d, v%d, v%d" % (sm + 2, sm + 2, sm + 3))
    s0, s1 = Tm + 8, Tm + 12
    A("v_permlane32_swap_b32 v%d, v%d\nv_permlane32_swap_b32 v%d, v%d" % (s0, s0 + 2, s1, s1 + 2))
    A("v_add_f32 v%d, v%d, v%d\nv_add_f32 v%d, v%d, v%d" % (s0, s0, s0 + 2, s1, s1, s1 + 2))
    A("v_permlane16_swap_b32 v%d, v%d" % (s0, s1))
    A("""v_add_f32 v%d, v%d, v%d
    v_and_b32 v1, 31, v0
    v_lshlrev_b32 v1, 7, v1
    v_lshrrev_b32 v2, 5, v0
    v_lshl_add_u32 v1, v2, 2, v1
    s_lshl_b32 s24, s29, 7
    s_lshl_b32 s27, s17, 3
    s_add_u32 s24, s24, s27
    s_add_u32 s24, s24, %d
    buffer_store_dword v%d, v1, s[12:15], s24 offen sc1""" % (s0, s0, s1, P3, s0))
    for fn in range(2):
        for i in range(4):
            h = HF + 4 * fn + i; o = ((i >> 1) * 2 + fn) * 4 + 2 * (i & 1); t = RES + o
            A("v_lshlrev_b32 v%d, 16, v%d\nv_and_b32 v%d, 0xffff0000, v%d" % (t, h, t + 1, h))
            A("v_pk_add_f32 %s, %s, %s" % (v(t, 2), v(t, 2), v(ACC + o, 2)))
    setflag(A, 4, "s23")
    A.stamp(11)
    A("s_cmp_ge_u32 s4, 28\ns_cbranch_scc1 L_c_g4")
    A("""s_cmp_ge_u32 s4, 14
    s_cselect_b32 s32, 1, 0
    s_cselect_b32 s33, 14, 0
    s_sub_u32 s33, s4, s33
    s_lshl_b32 s18, s3, 1
    s_add_u32 s32, s32, s18
    s_lshl_b32 s34, s32, 7
    s_lshl_b32 s18, s22, 6
    s_add_u32 s34, s34, s18
    s_lshl_b32 s18, s21, 12
    v_lshlrev_b32 v3, 7, v7
    v_lshl_add_u32 v3, v4, 5, v3
    s_lshl_b32 s35, s34, 7
    s_add_u32 s35, s35, %d""" % P3)
    tr_bases(A, 8, 4, None, "s18")
    A("s_barrier")
    colsum(A, 3, hA)
    A.stamp(12)
    def hook3(A):
        for fn in range(4):
            if fn == 2: A("s_add_u32 s35, s35, 4096")
            for j in range(2): A("buffer_load_dwordx4 %s, v3, s[12:15], s35 offen offset:%d" % (v(PS + 8 * fn + 4 * j, 4), 2048 * (fn & 1) + 16 * j))
    init_hooks[3] = hook3
    gemm_main(A, 3, hA, hB, False)
    A("s_barrier")
    A.stamp(13)
    A("""s_lshr_b32 s24, s34, 4
    s_mul_i32 s24, s24, %d
    s_lshl_b32 s27, s33, 2
    s_lshl_b32 s18, s21, 1
    s_add_u32 s27, s27, s18
    s_lshl_b32 s27, s27, 10
    s_add_u32 s24, s24, s27
    s_add_u32 s24, s24, %d
    s_waitcnt vmcnt(0)""" % (32 * 1792, H3))
    F = 4
    for fn in range(F):
        p = PS + 8 * fn
        A("v_pk_add_f32 %s, %s, %s" % (v(p, 2), v(p, 2), v(p + 2, 2)))
        A("v_pk_add_f32 %s, %s, %s" % (v(p + 4, 2), v(p + 4, 2), v(p + 6, 2)))
        A("v_pk_add_f32 %s, %s, %s" % (v(p, 2), v(p, 2), v(p + 4, 2)))
        A("v_mov_b32 v%d, v%d\nv_mov_b32 v%d, v%d" % (p + 2, p, p + 3, p + 1))
    for fn in range(F):
        p = PS + 8 * fn
        A("v_permlane32_swap_b32 v%d, v%d\nv_permlane32_swap_b32 v%d, v%d" % (p, p + 2, p + 1, p + 3))
    for fn in range(F):
        p = PS + 8 * fn
        A("v_pk_add_f32 %s, %s, %s" % (v(p, 2), v(p, 2), v(p + 2, 2)))
        A("v_mov_b32 v%d, v%d\nv_mov_b32 v%d, v%d" % (p + 2, p, p + 3, p + 1))
    for fn in range(F):
        p = PS + 8 * fn
        A("v_permlane16_swap_b32 v%d, v%d\nv_permlane16_swap_b32 v%d, v%d" % (p, p + 2, p + 1, p + 3))
    for fn in range(F):
        p = PS + 8 * fn
        A("v_pk_add_f32 %s, %s, %s" % (v(p, 2), v(p, 2), v(p + 2, 2)))
        rowstats(A, p, p + 1, 512, p + 2, p + 4, p + 3)
        A("v_mul_f32 v%d, -1.0, v%d" % (p + 4, p + 4))
        gelu_consts(A, p + 3, p + 6, p)
    for fn in range(F):
        p = PS + 8 * fn
        for pr in range(2):
            o = Tm + 8 + 4 * ((fn * 2 + pr) & 1)
            gelu8(A, ACC + ((2 * pr) * F + fn) * 4, ACC + ((2 * pr + 1) * F + fn) * 4, CS + 8 * pr, p + 4, p + 6, p, Tm, o)
            A("buffer_store_dwordx4 %s, v5, s[12:15], s24 offen offset:%d sc1" % (v(o, 4), 1024 * pr))
        if fn < F - 1: A("s_add_u32 s24, s24, %d" % (32 * 1792))
    A("""s_lshl_b32 s18, s32, 1
    s_add_u32 s18, s18, s22
    s_lshl_b32 s18, s18, 5
    s_lshl_b32 s27, s33, 1
    s_add_u32 s18, s18, s27
    s_add_u32 s18, s18, s21
    s_lshl_b32 s18, s18, 2""")
    setflag(A, 5, "s18")
    A("s_lshl_b32 s24, s21, 1")
    tr_bases(A, 8, 2, "s24")
    A.label("L_c_g4")
    A.stamp(14)
    gemm_main(A, 4, hA, hB, True)
    srd(A, 8, 50, 0x200000)
    A("""v_lshlrev_b32 v1, 10, v7
    v_and_b32 v2, 1, v4
    v_lshl_add_u32 v1, v2, 5, v1
    v_lshrrev_b32 v2, 1, v4
    v_lshl_add_u32 v1, v2, 4, v1
    s_lshl_b32 s24, s29, 10
    s_lshl_b32 s27, s17, 6
    s_add_u32 s24, s24, s27
    s_add_u32 s27, s24, 16384""")
    for fn in range(2):
        src = [ACC + 4 * fn, ACC + 4 * fn + 2, ACC + 8 + 4 * fn, ACC + 8 + 4 * fn + 2]
        o = Tm + 4 * fn
        for i in range(4): A("v_cvt_pk_bf16_f32 v%d, v%d, v%d" % (o + i, src[i], src[i] + 1))
        A("v_permlane16_swap_b32 v%d, v%d\nv_permlane16_swap_b32 v%d, v%d" % (o, o + 2, o + 1, o + 3))
        A("buffer_store_dwordx4 %s, v1, s[8:11], %s offen" % (v(o, 4), "s24" if fn == 0 else "s27"))
    A.pend(0)

def gen_fused(A, opt={}):
    hA, hB, iA, iB = schedule()
    A.l.append(".p2align 8"); A.label(NAME + "_kernel")
    A.pstart()
    A("""s_cmp_ge_u32 s2, 256
    s_cbranch_scc1 L_end
    v_lshrrev_b32 v1, 6, v0
    v_and_b32 v0, 63, v0
    v_readfirstlane_b32 s5, v1
    s_load_dwordx2 s[52:53], s[0:1], 112
    s_and_b32 s3, s2, 7
    s_lshr_b32 s4, s2, 3
    s_cmp_ge_u32 s5, 4
    s_cbranch_scc1 L_loader
    s_load_dwordx8 s[36:43], s[0:1], 0
    s_load_dwordx4 s[44:47], s[0:1], 32
    s_load_dwordx2 s[48:49], s[0:1], 48
    s_load_dwordx2 s[50:51], s[0:1], 96
    v_lshrrev_b32 v1, 2, v0
    v_mul_u32_u24 v1, %d, v1
    v_and_b32 v2, 3, v0
    v_lshl_add_u32 v1, v2, 2, v1
    v_add_u32 v1, 0x10000, v1
    v_mov_b32 v2, 0
    s_mov_b64 exec, 0xfff
    ds_write_b32 v1, v2 offset:%d
    s_mov_b64 exec, -1""" % (RP, SYNCW - 65536))
    gen_compute(A, hA, hB, opt)
    A.label("L_end")
    A("s_endpgm")
    A.label("L_loader")
    A("""s_load_dwordx2 s[36:37], s[0:1], 0
    s_load_dwordx8 s[40:47], s[0:1], 64
    s_load_dwordx2 s[50:51], s[0:1], 104""")
    gen_loader(A, hA, hB, iA, iB, opt)
    return (NAME + "_kernel", 256, 512, 163840, 232, 0)
```

```python
from g_base import *
from g_k1 import rowstats
K1C = 2.0 * 0.7978845608028654 * LOG2E
K2C = K1C * 0.044715

class VM:
    def __init__(self): self.n = 0
    def add(self, k=1): self.n += k; return self.n
    def wait(self, A, idx): A("s_waitcnt vmcnt(%d)" % min(63, self.n - idx))

def gelu8(A, acc0, acc1, cs, nmu, P1, R, T, out):
    src = [acc0, acc0 + 2, acc1, acc1 + 2]
    for i in range(4):
        A("v_pk_fma_f32 %s, %s, %s, %s op_sel_hi:[1,0,1]" % (v(src[i], 2), v(cs + 2 * i, 2), v(nmu, 2), v(src[i], 2)))
    for i in range(4):
        A("v_pk_mul_f32 %s, %s, %s" % (v(T + 2 * i, 2), v(src[i], 2), v(src[i], 2)))
    for i in range(4):
        A("v_pk_fma_f32 %s, %s, %s, %s op_sel:[0,1,0] op_sel_hi:[1,1,0]" % (v(T + 2 * i, 2), v(T + 2 * i, 2), v(P1, 2), v(P1, 2)))
    for i in range(4):
        A("v_pk_mul_f32 %s, %s, %s" % (v(T + 2 * i, 2), v(T + 2 * i, 2), v(src[i], 2)))
    for i in range(8): A("v_exp_f32 v%d, v%d" % (T + i, T + i))
    for i in range(4):
        A("v_pk_fma_f32 %s, %s, %s, %s op_sel_hi:[1,0,0]" % (v(T + 2 * i, 2), v(T + 2 * i, 2), v(R, 2), v(R, 2)))
    for i in range(8): A("v_rcp_f32 v%d, v%d" % (T + i, T + i))
    for i in range(4):
        A("v_pk_mul_f32 %s, %s, %s" % (v(T + 2 * i, 2), v(T + 2 * i, 2), v(src[i], 2)))
    for i in range(4):
        A("v_cvt_pk_bf16_f32 v%d, v%d, v%d" % (out + i, T + 2 * i, T + 2 * i + 1))

def gelu_consts(A, rho, P1, R):
    A("v_mul_f32 v%d, %s, v%d" % (P1, f32(-K1C), rho))
    A("v_mul_f32 v%d, v%d, v%d" % (P1 + 1, rho, rho))
    A("v_rcp_f32 v%d, v%d" % (R, rho))
    A("v_mul_f32 v%d, v%d, v%d" % (P1 + 1, P1 + 1, rho))
    A("v_mul_f32 v%d, %s, v%d" % (P1 + 1, f32(-K2C), P1 + 1))

def gen_gemm(A, which, P=6):
    cfg = {1: dict(T=64, K=512, wptr=64, wsz=0x80000, PA=1024, btr=1, BB=WS_HT, C=512),
           2: dict(T=64, K=512, wptr=72, wsz=0x80000, PA=1024, btr=0, BB=WS_H1, C=512),
           3: dict(T=128, K=512, wptr=80, wsz=0x1c0000, PA=3584, btr=0, BB=WS_X1, C=512),
           4: dict(T=64, K=1792, wptr=88, wsz=0x1c0000, PA=1024, btr=0, BB=WS_H3, C=1792)}[which]
    T, K, PA, btr, BB, C = cfg["T"], cfg["K"], cfg["PA"], cfg["btr"], cfg["BB"], cfg["C"]
    big = T == 128
    F = T // 32
    KS = 32 if big else 64
    SPS = KS // 32
    S = K // KS
    NSLOT = 8
    nm = "g%d" % which
    END = "L_%s_end" % nm
    A.l.append(".p2align 8"); A.label(nm + "_kernel")
    A.pstart()
    vm = VM()
    vDA, vDB = 2, 3
    nAb = F // 2; nBb = 2 if btr else 1
    vRA = 8; vRB = vRA + 2 * nAb
    FA = 16; FB = FA + 2 * F * 4; ACC = FB + 2 * F * 4; X = ACC + F * F * 4
    A("""s_cmp_ge_u32 s2, 256
    s_cbranch_scc1 %s
    s_load_dwordx2 s[6:7], s[0:1], 112
    s_load_dwordx2 s[4:5], s[0:1], %d
    s_load_dwordx2 s[36:37], s[0:1], 96
    s_and_b32 s16, s2, 7
    s_lshr_b32 s17, s2, 3
    v_lshrrev_b32 v1, 6, v0
    v_and_b32 v0, 63, v0
    v_readfirstlane_b32 s18, v1""" % (END, cfg["wptr"]))
    if big:
        A("""s_cmp_ge_u32 s17, 28
        s_cbranch_scc1 %s
        s_cmp_ge_u32 s17, 14
        s_cselect_b32 s19, 1, 0
        s_cselect_b32 s20, 14, 0
        s_sub_u32 s20, s17, s20
        s_lshl_b32 s16, s16, 1
        s_add_u32 s19, s19, s16""" % END)
    else:
        A("""s_lshr_b32 s19, s17, 3
        s_and_b32 s20, s17, 7
        s_lshl_b32 s16, s16, 2
        s_add_u32 s19, s19, s16""")
    A("""s_and_b32 s21, s18, 1
    s_lshr_b32 s22, s18, 1
    v_lshrrev_b32 v4, 3, v0
    v_and_b32 v5, 7, v0
    v_bfe_u32 v6, v0, 4, 1
    v_lshlrev_b32 v7, 2, v6
    v_xor_b32 v7, v7, v5
    v_mul_u32_u24 v%d, %d, v4
    v_lshl_add_u32 v%d, v7, 4, v%d
    s_mul_i32 s23, s18, %d
    s_lshl_b32 s24, s20, %d
    s_add_u32 s23, s23, s24""" % (vDA, PA, vDA, vDA, 8 * PA, 8 if big else 7))
    if btr:
        A("""v_lshlrev_b32 v7, 1, v6
        s_lshl_b32 s24, s21, 2
        v_xor_b32 v7, v7, v5
        v_xor_b32 v7, s24, v7
        v_lshlrev_b32 v%d, 12, v4
        v_lshl_add_u32 v%d, v7, 4, v%d
        s_lshl_b32 s25, s18, 15
        s_lshl_b32 s24, s19, 7
        s_add_u32 s25, s25, s24
        s_add_u32 s25, s25, %d""" % (vDB, vDB, vDB, BB))
        B2, BST = 32 * 4096, 64 * 4096
    else:
        A("""v_lshlrev_b32 v%d, 4, v0
        s_lshl_b32 s24, s19, %d
        s_add_u32 s24, s24, s18
        s_mul_i32 s25, s24, %d
        s_add_u32 s25, s25, %d""" % (vDB, 3 if big else 2, 32 * C, BB))
        B2, BST = (4 * 32 * C, 1024) if big else (1024, 2048)
    A2, AST = (128, 32 * PA) if big else (32 * PA, 64 * PA)
    A("s_lshl_b32 s26, s18, 10\ns_waitcnt lgkmcnt(0)")
    srd(A, 8, 4, cfg["wsz"]); srd(A, 12, 6, WS_END)
    stage_last = {}
    def dma(st):
        base = (st % NSLOT) * 16384
        A("s_add_u32 m0, s26, %d\ns_add_u32 s27, s23, %d" % (base, A2))
        A("buffer_load_dwordx4 v%d, s[8:11], s23 offen lds" % vDA)
        A("s_add_u32 m0, s26, %d\ns_add_u32 s23, s23, %d" % (base + 4096, AST))
        A("buffer_load_dwordx4 v%d, s[8:11], s27 offen lds" % vDA)
        A("s_add_u32 m0, s26, %d\ns_add_u32 s27, s25, %d" % (base + 8192, B2))
        A("buffer_load_dwordx4 v%d, s[12:15], s25 offen lds" % vDB)
        A("s_add_u32 m0, s26, %d\ns_add_u32 s25, s25, %d" % (base + 12288, BST))
        A("buffer_load_dwordx4 v%d, s[12:15], s27 offen lds" % vDB)
        stage_last[st] = vm.add(4)
    nxt = 0
    dma(0); dma(1); nxt = 2
    A("""v_lshrrev_b32 v4, 4, v0
    v_bfe_u32 v5, v0, 2, 2
    v_and_b32 v6, 3, v0
    v_lshlrev_b32 v7, 10, v4
    v_lshl_add_u32 v7, v5, 7, v7
    v_bfe_u32 v1, v0, 3, 1""")
    if big:
        A("""v_lshl_add_u32 v%d, v6, 4, v7
        s_lshl_b32 s24, s21, 12
        v_lshl_add_u32 v%d, v1, 6, v%d
        v_add_u32 v%d, s24, v%d
        v_xor_b32 v%d, 64, v%d""" % (vRA, vRA, vRA, vRA, vRA, vRA + 1, vRA))
    else:
        A("""v_xor_b32 v%d, s21, v1
        v_lshl_add_u32 v%d, v%d, 6, v7
        v_lshl_add_u32 v%d, v6, 4, v%d""" % (vRA, vRA, vRA, vRA, vRA))
    if btr:
        A("""v_and_b32 v%d, 1, v4
        v_xor_b32 v%d, s22, v%d
        v_lshl_add_u32 v%d, v%d, 1, v1
        v_lshl_add_u32 v%d, v%d, 5, v7
        v_lshl_add_u32 v%d, v6, 3, v%d
        v_add_u32 v%d, 8192, v%d
        v_xor_b32 v%d, 32, v%d""" % ((vRB,) * 11 + (vRB + 1, vRB)))
    else:
        A("""s_mul_i32 s24, s22, %d
        s_add_u32 s24, s24, 8192
        v_lshl_add_u32 v%d, v0, 4, s24""" % (1024 * F, vRB))
    for i in range(nAb): A("v_add_u32 v%d, 0x10000, v%d" % (vRA + nAb + i, vRA + i))
    for i in range(nBb): A("v_add_u32 v%d, 0x10000, v%d" % (vRB + nBb + i, vRB + i))
    while nxt < min(P, S): dma(nxt); nxt += 1
    A("""s_mul_i32 s29, s19, %d
    s_mul_i32 s24, s22, %d
    s_add_u32 s29, s29, s24
    s_lshr_b32 s28, s29, 4
    s_mul_i32 s30, s20, %d
    s_mul_i32 s24, s21, %d
    s_add_u32 s30, s30, s24""" % (T, T // 2, T // 32, T // 64))
    ep = {}
    A("v_lshlrev_b32 v5, 4, v0\nv_lshlrev_b32 v6, 5, v4\nv_and_b32 v7, 15, v0")
    if which in (1, 3):
        CS = X; X += 8 * nAb
        A("s_lshl_b32 s24, s30, 7\ns_add_u32 s24, s24, %d" % (WS_CS1 if which == 1 else WS_CS3))
        for p in range(nAb):
            A("buffer_load_dwordx4 %s, v6, s[12:15], s24 offen offset:%d" % (v(CS + 8 * p, 4), 128 * p))
            A("buffer_load_dwordx4 %s, v6, s[12:15], s24 offen offset:%d" % (v(CS + 8 * p + 4, 4), 128 * p + 16))
        ep["cs"] = vm.add(2 * nAb)
    A("s_lshl_b32 s31, s28, 14\ns_lshl_b32 s24, s30, 10\ns_add_u32 s31, s31, s24")
    if which in (2, 4):
        HR = X; X += 8
        A("s_add_u32 s24, s31, %d\ns_add_u32 s27, s31, %d" % (WS_H, WS_H + 16384))
        A("buffer_load_dwordx4 %s, v5, s[12:15], s24 offen" % v(HR, 4))
        A("buffer_load_dwordx4 %s, v5, s[12:15], s27 offen" % v(HR + 4, 4))
        vm.add(2)
        X1R = X; X += 8
        if which == 2:
            A("v_lshlrev_b32 v1, 3, v7\ns_lshl_b32 s24, s29, 3\ns_add_u32 s24, s24, %d" % WS_ST1)
            A("buffer_load_dwordx2 %s, v1, s[12:15], s24 offen" % v(X1R, 2))
            A("buffer_load_dwordx2 %s, v1, s[12:15], s24 offen offset:128" % v(X1R + 2, 2))
        else:
            A("s_add_u32 s24, s31, %d\ns_add_u32 s27, s31, %d" % (WS_X1, WS_X1 + 16384))
            A("buffer_load_dwordx4 %s, v5, s[12:15], s24 offen" % v(X1R, 4))
            A("buffer_load_dwordx4 %s, v5, s[12:15], s27 offen" % v(X1R + 4, 4))
        ep["res"] = vm.add(2)
    if which == 3:
        PS = X; X += 8 * F + 8
        A("v_lshlrev_b32 v1, 16, v4\nv_lshl_add_u32 v1, v7, 2, v1\ns_lshl_b32 s24, s29, 2\ns_add_u32 s24, s24, %d" % WS_P3)
        for j in range(8):
            for fn in range(F):
                A("buffer_load_dword v%d, v1, s[12:15], s24 offen offset:%d" % (PS + 8 * fn + j, 64 * fn))
            if j < 7: A("s_add_u32 s24, s24, 8192")
        ep["ps"] = vm.add(8 * F)
    if which == 1:
        ONE = X; X += 4; SA = X; X += 8; GA = X; X += 8
        for i in range(4): A("v_mov_b32 v%d, 0x3f803f80" % (ONE + i))
    nsteps = K // 32
    def reads(t):
        st, ks = t // SPS, t % SPS
        base = (st % NSLOT) * 16384
        rg = base >> 16; base &= 0xffff
        b = t & 1
        L = []
        la = []; lb = []
        for fn in range(F):
            d = FB + (b * F + fn) * 4
            if btr:
                for hh in range(2): lb.append("ds_read_b64_tr_b16 %s, v%d offset:%d" % (v(d + 2 * hh, 2), vRB + rg * nBb + fn, base + 4096 * ks + 512 * hh))
            else:
                lb.append("ds_read_b128 %s, v%d offset:%d" % (v(d, 4), vRB + rg, base + 4096 * ks + 1024 * fn))
        for fm in range(F):
            d = FA + (b * F + fm) * 4
            for hh in range(2): la.append("ds_read_b64_tr_b16 %s, v%d offset:%d" % (v(d + 2 * hh, 2), vRA + rg * nAb + (fm >> 1), base + 4096 * ks + 512 * hh + 8 * (fm & 1)))
        return lb + la
    def mfmas(t):
        b = t & 1
        M = []
        for fm in range(F):
            for fn in range(F):
                c = ACC + (fm * F + fn) * 4
                M.append("v_mfma_f32_16x16x32_bf16 %s, %s, %s, %s" % (v(c, 4), v(FA + (b * F + fm) * 4, 4), v(FB + (b * F + fn) * 4, 4), "0" if t == 0 else v(c, 4)))
        if which == 1:
            E = []
            for fn in range(F):
                fb = v(FB + (b * F + fn) * 4, 4)
                E.append("v_mfma_f32_16x16x32_bf16 %s, %s, %s, %s" % (v(SA + 4 * fn, 4), v(ONE, 4), fb, "0" if t == 0 else v(SA + 4 * fn, 4)))
                E.append("v_mfma_f32_16x16x32_bf16 %s, %s, %s, %s" % (v(GA + 4 * fn, 4), fb, fb, "0" if t == 0 else v(GA + 4 * fn, 4)))
            M = E + M
        return M
    A.stamp(1)
    vm.wait(A, stage_last[0]); A("s_barrier")
    A.stamp(2)
    for r in reads(0): A(r)
    for t in range(nsteps):
        st = t // SPS
        newstage = (t + 1 < nsteps) and ((t + 1) % SPS == 0)
        if newstage:
            vm.wait(A, stage_last[st + 1]); A("s_barrier")
        R = reads(t + 1) if t + 1 < nsteps else []
        M = mfmas(t)
        A("s_waitcnt lgkmcnt(0)")
        per = -(-len(R) // max(1, len(M) - 1)) if R else 0
        dodma = newstage and nxt < S and (nxt < NSLOT or nxt - NSLOT <= st - 1)
        for i, m in enumerate(M):
            for r in R[i * per:(i + 1) * per]: A(r)
            A(m)
            if i == 1 and dodma: dma(nxt); nxt += 1
    assert nxt == S, (nxt, S)
    A.stamp(3)
    Tm = FA
    A("s_waitcnt vmcnt(0)")
    if which == 1:
        A("""s_lshr_b32 s24, s30, 1
        s_lshl_b32 s24, s24, 14
        s_and_b32 s27, s30, 1
        s_lshl_b32 s27, s27, 12
        s_add_u32 s24, s24, s27
        v_add_u32 v%d, s24, v%d
        v_add_u32 v%d, s24, v%d""" % (vRB, vRB, vRB + 1, vRB + 1))
        HF = FB
        for fn in range(2):
            for hh in range(2): A("ds_read_b64_tr_b16 %s, v%d offset:%d" % (v(HF + 4 * fn + 2 * hh, 2), vRB + fn, 512 * hh))
        A("""v_and_b32 v1, 3, v0
        v_lshrrev_b32 v2, 2, v7
        v_cmp_eq_u32 s[40:41], 1, v1
        v_cmp_eq_u32 s[42:43], 2, v1
        v_cmp_eq_u32 s[44:45], 3, v1
        v_cmp_eq_u32 s[46:47], v2, v4
        s_mov_b32 s90, %s""" % f32(1.0 / 512))
        for fn in range(2):
            g = GA + 4 * fn
            A("v_cndmask_b32 v%d, v%d, v%d, s[40:41]" % (g, g, g + 1))
            A("v_cndmask_b32 v%d, v%d, v%d, s[42:43]" % (g, g, g + 2))
            A("v_cndmask_b32 v%d, v%d, v%d, s[44:45]" % (g, g, g + 3))
            A("v_cndmask_b32 v%d, 0, v%d, s[46:47]" % (g, g))
            A("v_mov_b32 v%d, v%d" % (g + 1, g))
        for fn in range(2): A("v_permlane32_swap_b32 v%d, v%d" % (GA + 4 * fn, GA + 4 * fn + 1))
        for fn in range(2):
            g = GA + 4 * fn
            A("v_add_f32 v%d, v%d, v%d\nv_mov_b32 v%d, v%d" % (g, g, g + 1, g + 1, g))
        for fn in range(2): A("v_permlane16_swap_b32 v%d, v%d" % (GA + 4 * fn, GA + 4 * fn + 1))
        A("s_add_u32 s24, s31, %d\ns_add_u32 s27, s31, %d\ns_waitcnt lgkmcnt(0)" % (WS_H, WS_H + 16384))
        A("buffer_store_dwordx4 %s, v5, s[12:15], s24 offen" % v(HF, 4))
        A("buffer_store_dwordx4 %s, v5, s[12:15], s27 offen" % v(HF + 4, 4))
        A("""s_lshr_b32 s24, s30, 2
        s_lshr_b32 s27, s24, 1
        s_add_u32 s27, s27, 1
        s_sub_u32 s32, 0, s27
        s_bitcmp1_b32 s24, 0
        s_cselect_b32 s27, s32, s27
        s_add_u32 s27, s27, s29
        s_lshl_b32 s33, s30, 10
        s_add_u32 s33, s33, %d
        v_lshlrev_b32 v3, 3, v7
        s_lshl_b32 s34, s29, 3
        s_add_u32 s34, s34, %d""" % (WS_H1, WS_ST1))
        for fn in range(2):
            g = GA + 4 * fn; sa = SA + 4 * fn
            A("v_add_f32 v%d, v%d, v%d" % (g, g, g + 1))
            rowstats(A, sa, g, 512, g + 1, sa + 2, sa + 3)
            A("buffer_store_dwordx2 %s, v3, s[12:15], s34 offen offset:%d" % (v(sa + 2, 2), 128 * fn))
            A("v_sub_f32 v%d, v%d, v%d" % (sa, sa, sa + 2))
            A("v_mul_f32 v%d, v%d, v%d" % (g, g, sa + 3))
            A("v_mul_f32 v%d, v%d, v%d" % (sa, sa, sa + 3))
            A("v_mul_f32 v%d, v%d, v%d" % (g, g, sa + 3))
            bf16r(A, sa, sa)
            bf16r(A, g, g)
            A("v_add_f32 v%d, %s, v%d" % (g, f32(1e-5), g))
            A("v_fma_f32 v%d, -v%d, v%d, -v%d" % (sa, sa, g + 1, sa + 2))
            bf16r(A, g, g)
            A("v_sqrt_f32 v%d, v%d" % (g, g))
            bf16r(A, g, g)
            A("v_rcp_f32 v%d, v%d" % (g + 1, g))
            A("v_mul_f32 v%d, v%d, v%d" % (g + 1, g + 1, sa + 3))
            gelu_consts(A, g + 1, g + 2, g)
            gelu8(A, ACC + 4 * fn, ACC + 8 + 4 * fn, CS, sa, g + 2, g, Tm, Tm + 8 + 4 * fn)
            o = Tm + 8 + 4 * fn
            A("""v_add_u32 v1, s27, v7
            v_add_u32 v1, %d, v1
            v_cmp_gt_u32 vcc, 2048, v1
            v_and_b32 v1, 2047, v1
            v_lshrrev_b32 v2, 4, v1
            v_and_b32 v1, 15, v1
            v_lshlrev_b32 v2, 14, v2
            v_lshl_add_u32 v2, v1, 4, v2
            v_lshl_add_u32 v2, v4, 8, v2""" % (16 * fn))
            for i in range(4): A("v_cndmask_b32 v%d, 0, v%d, vcc" % (o + i, o + i))
            A("buffer_store_dwordx4 %s, v2, s[12:15], s33 offen" % v(o, 4))
    elif which == 2:
        A("s_add_u32 s24, s31, %d\ns_add_u32 s27, s31, %d" % (WS_X1, WS_X1 + 16384))
        for fn in range(2):
            mu = X1R + 2 * fn
            A("v_mul_f32 v%d, -v%d, v%d" % (mu, mu, mu + 1))
            src = [ACC + 4 * fn, ACC + 4 * fn + 2, ACC + 8 + 4 * fn, ACC + 8 + 4 * fn + 2]
            for i in range(4):
                h = HR + 4 * fn + i; t = Tm + 2 * i
                A("v_lshlrev_b32 v%d, 16, v%d\nv_and_b32 v%d, 0xffff0000, v%d" % (t, h, t + 1, h))
                A("v_pk_fma_f32 %s, %s, %s, %s op_sel:[0,1,0] op_sel_hi:[1,1,0]" % (v(t, 2), v(t, 2), v(mu, 2), v(mu, 2)))
                A("v_pk_add_f32 %s, %s, %s" % (v(t, 2), v(t, 2), v(src[i], 2)))
                A("v_cvt_pk_bf16_f32 v%d, v%d, v%d" % (h, t, t + 1))
            A("buffer_store_dwordx4 %s, v5, s[12:15], %s offen" % (v(HR + 4 * fn, 4), "s24" if fn == 0 else "s27"))
            sm = Tm + 8 + 4 * fn
            A("v_pk_add_f32 %s, %s, %s" % (v(sm, 2), v(Tm, 2), v(Tm + 2, 2)))
            A("v_pk_mul_f32 %s, %s, %s" % (v(sm + 2, 2), v(Tm, 2), v(Tm, 2)))
            A("v_pk_add_f32 %s, %s, %s" % (v(sm, 2), v(sm, 2), v(Tm + 4, 2)))
            A("v_pk_fma_f32 %s, %s, %s, %s" % (v(sm + 2, 2), v(Tm + 2, 2), v(Tm + 2, 2), v(sm + 2, 2)))
            A("v_pk_add_f32 %s, %s, %s" % (v(sm, 2), v(sm, 2), v(Tm + 6, 2)))
            A("v_pk_fma_f32 %s, %s, %s, %s" % (v(sm + 2, 2), v(Tm + 4, 2), v(Tm + 4, 2), v(sm + 2, 2)))
            A("v_add_f32 v%d, v%d, v%d" % (sm, sm, sm + 1))
            A("v_pk_fma_f32 %s, %s, %s, %s" % (v(sm + 2, 2), v(Tm + 6, 2), v(Tm + 6, 2), v(sm + 2, 2)))
            A("v_add_f32 v%d, v%d, v%d" % (sm + 2, sm + 2, sm + 3))
        s0, s1 = Tm + 8, Tm + 12
        A("v_permlane32_swap_b32 v%d, v%d\nv_permlane32_swap_b32 v%d, v%d" % (s0, s0 + 2, s1, s1 + 2))
        A("v_add_f32 v%d, v%d, v%d\nv_add_f32 v%d, v%d, v%d" % (s0, s0, s0 + 2, s1, s1, s1 + 2))
        A("v_permlane16_swap_b32 v%d, v%d" % (s0, s1))
        A("""v_add_f32 v%d, v%d, v%d
        v_and_b32 v1, 31, v0
        v_lshlrev_b32 v1, 2, v1
        v_lshrrev_b32 v2, 5, v0
        v_lshl_add_u32 v1, v2, 13, v1
        s_lshl_b32 s24, s30, 14
        s_lshl_b32 s27, s29, 2
        s_add_u32 s24, s24, s27
        s_add_u32 s24, s24, %d
        buffer_store_dword v%d, v1, s[12:15], s24 offen""" % (s0, s0, s1, WS_P3, s0))
    elif which == 3:
        A("s_mov_b32 s90, %s" % f32(1.0 / 512))
        A("s_mul_i32 s24, s28, %d\ns_lshl_b32 s27, s30, 10\ns_add_u32 s24, s24, s27\ns_add_u32 s24, s24, %d" % (32 * 1792, WS_H3))
        for fn in range(F):
            p = PS + 8 * fn
            A("v_pk_add_f32 %s, %s, %s" % (v(p, 2), v(p, 2), v(p + 2, 2)))
            A("v_pk_add_f32 %s, %s, %s" % (v(p + 4, 2), v(p + 4, 2), v(p + 6, 2)))
            A("v_pk_add_f32 %s, %s, %s" % (v(p, 2), v(p, 2), v(p + 4, 2)))
            A("v_mov_b32 v%d, v%d\nv_mov_b32 v%d, v%d" % (p + 2, p, p + 3, p + 1))
        for fn in range(F):
            p = PS + 8 * fn
            A("v_permlane32_swap_b32 v%d, v%d\nv_permlane32_swap_b32 v%d, v%d" % (p, p + 2, p + 1, p + 3))
        for fn in range(F):
            p = PS + 8 * fn
            A("v_pk_add_f32 %s, %s, %s" % (v(p, 2), v(p, 2), v(p + 2, 2)))
            A("v_mov_b32 v%d, v%d\nv_mov_b32 v%d, v%d" % (p + 2, p, p + 3, p + 1))
        for fn in range(F):
            p = PS + 8 * fn
            A("v_permlane16_swap_b32 v%d, v%d\nv_permlane16_swap_b32 v%d, v%d" % (p, p + 2, p + 1, p + 3))
        for fn in range(F):
            p = PS + 8 * fn
            A("v_pk_add_f32 %s, %s, %s" % (v(p, 2), v(p, 2), v(p + 2, 2)))
            rowstats(A, p, p + 1, 512, p + 2, p + 4, p + 3)
            A("v_mul_f32 v%d, -1.0, v%d" % (p + 4, p + 4))
            gelu_consts(A, p + 3, p + 6, p)
        for fn in range(F):
            p = PS + 8 * fn
            for pr in range(nAb):
                o = Tm + 8 + 4 * ((fn * nAb + pr) & 1)
                gelu8(A, ACC + ((2 * pr) * F + fn) * 4, ACC + ((2 * pr + 1) * F + fn) * 4, CS + 8 * pr, p + 4, p + 6, p, Tm, o)
                A("buffer_store_dwordx4 %s, v5, s[12:15], s24 offen offset:%d" % (v(o, 4), 1024 * pr))
            if fn < F - 1: A("s_add_u32 s24, s24, %d" % (32 * 1792))
    else:
        srd(A, 8, 36, 0x200000)
        A("""v_lshlrev_b32 v1, 10, v7
        v_lshl_add_u32 v1, v4, 4, v1
        s_lshl_b32 s24, s29, 10
        s_lshl_b32 s27, s30, 6
        s_add_u32 s24, s24, s27
        s_add_u32 s27, s24, 16384""")
        for fn in range(2):
            src = [ACC + 4 * fn, ACC + 4 * fn + 2, ACC + 8 + 4 * fn, ACC + 8 + 4 * fn + 2]
            for i in range(4):
                h = HR + 4 * fn + i; x = X1R + 4 * fn + i; t = Tm + 4 * i
                A("v_lshlrev_b32 v%d, 16, v%d\nv_and_b32 v%d, 0xffff0000, v%d" % (t, h, t + 1, h))
                A("v_lshlrev_b32 v%d, 16, v%d\nv_and_b32 v%d, 0xffff0000, v%d" % (t + 2, x, t + 3, x))
                A("v_pk_add_f32 %s, %s, %s" % (v(t, 2), v(t, 2), v(src[i], 2)))
                A("v_pk_add_f32 %s, %s, %s" % (v(t, 2), v(t, 2), v(t + 2, 2)))
                A("v_cvt_pk_bf16_f32 v%d, v%d, v%d" % (h, t, t + 1))
            A("buffer_store_dwordx4 %s, v1, s[8:11], %s offen" % (v(HR + 4 * fn, 4), "s24" if fn == 0 else "s27"))
    A.stamp(4); A.pend(1 + which)
    A.label(END)
    A("s_endpgm")
    return (nm + "_kernel", 256, 256, NSLOT * 16384, X, 0)
```

```python
from g_base import *
K1_NCS, K1_NLN, K1_NKG = 36, 128, 256
K1_GRID = K1_NCS + K1_NLN + K1_NKG
K1_LDS = 2 * 33280

def rowstats(A, sm, sq, n, tmp, mu, rinv):
    A("v_mul_f32 v%d, %s, v%d" % (sm, f32(1.0 / n), sm))
    A("v_mul_f32 v%d, v%d, v%d" % (tmp, sm, sm))
    A("v_fma_f32 v%d, v%d, %s, -v%d" % (sq, sq, "s90", tmp))
    A("v_max_f32 v%d, 0, v%d" % (sq, sq))
    bf16r(A, mu, sm)
    bf16r(A, tmp, sq)
    A("v_add_f32 v%d, %s, v%d" % (tmp, f32(1e-5), tmp))
    bf16r(A, tmp, tmp)
    A("v_sqrt_f32 v%d, v%d" % (tmp, tmp))
    A("s_nop 0")
    bf16r(A, tmp, tmp)
    A("v_rcp_f32 v%d, v%d" % (rinv, tmp))
    A("s_nop 0")

def gen_ln1(A):
    P = 1056; UO = 16 * P
    A("""v_lshrrev_b32 v1, 4, v0
    v_and_b32 v2, 15, v0
    s_lshl_b32 s4, s3, 14
    v_lshlrev_b32 v3, 10, v1
    v_lshl_add_u32 v3, v2, 4, v3""")
    for j in range(4):
        A("buffer_load_dwordx4 %s, v3, s[8:11], s4 offen offset:%d" % (v(8 + 4 * j, 4), 256 * j))
    A("""s_mov_b32 s20, 0x3f803f80
    s_mov_b32 s90, %s
    v_mul_u32_u24 v4, %d, v1
    v_lshl_add_u32 v4, v2, 4, v4
    v_mov_b32 v24, 0
    v_mov_b32 v25, 0
    v_mov_b32 v26, 0
    v_mov_b32 v27, 0""" % (f32(1.0 / 512), P))
    A("""v_and_b32 v28, 63, v0
    v_lshrrev_b32 v29, 6, v0
    v_bfe_u32 v30, v28, 2, 2
    v_bfe_u32 v31, v28, 4, 1
    v_lshl_add_u32 v30, v31, 3, v30
    v_mul_u32_u24 v5, %d, v30
    v_and_b32 v30, 3, v28
    v_lshl_add_u32 v5, v30, 3, v5
    v_lshrrev_b32 v30, 5, v28
    v_lshl_add_u32 v5, v30, 5, v5
    v_lshl_add_u32 v5, v29, 8, v5
    v_and_b32 v6, 15, v28
    v_lshl_add_u32 v6, v30, 4, v6
    v_lshl_add_u32 v6, v29, 7, v6
    v_lshlrev_b32 v6, 6, v6
    v_lshl_add_u32 v6, v31, 4, v6
    s_lshl_b32 s5, s3, 15""" % P)
    for j in range(4):
        A("s_waitcnt vmcnt(%d)" % (3 - j))
        A("ds_write_b128 v4, %s offset:%d" % (v(8 + 4 * j, 4), 256 * j))
        for e in range(4):
            r = 8 + 4 * j + e
            A("v_dot2_f32_bf16 v%d, v%d, s20, v%d" % (24 + (e & 1), r, 24 + (e & 1)))
            A("v_dot2_f32_bf16 v%d, v%d, v%d, v%d" % (26 + (e & 1), r, r, 26 + (e & 1)))
    A.stamp(1)
    A("s_nop 3\nv_add_f32 v24, v24, v25\nv_add_f32 v26, v26, v27")
    for sh in (8, 4, 2, 1):
        A("s_nop 1")
        A("v_add_f32_dpp v24, v24, v24 row_ror:%d row_mask:0xf bank_mask:0xf" % sh)
        A("v_add_f32_dpp v26, v26, v26 row_ror:%d row_mask:0xf bank_mask:0xf" % sh)
    rowstats(A, 24, 26, 512, 25, 27, 32)
    A("v_mov_b32 v33, v32\nv_mul_f32 v34, -v27, v32\nv_mov_b32 v35, v34")
    for j in range(4):
        for e in range(4):
            r = 8 + 4 * j + e
            t = 36 + 2 * (e & 1)
            A("v_lshlrev_b32 v%d, 16, v%d" % (t, r))
            A("v_and_b32 v%d, 0xffff0000, v%d" % (t + 1, r))
            A("v_pk_fma_f32 %s, %s, v[32:33], v[34:35]" % (v(t, 2), v(t, 2)))
            A("v_cvt_pk_f16_f32 v%d, v%d, v%d" % (r, t, t + 1))
        A("ds_write_b128 v4, %s offset:%d" % (v(8 + 4 * j, 4), UO + 256 * j))
    A("s_waitcnt lgkmcnt(0)\ns_barrier")
    for arr in (1, 0):
        for it in range(4):
            r = 8 + 16 * arr + 4 * it
            o = (0 if arr else UO) + 64 * it
            A("ds_read_b64_tr_b16 %s, v5 offset:%d" % (v(r, 2), o))
            A("ds_read_b64_tr_b16 %s, v5 offset:%d" % (v(r + 2, 2), o + 4 * P))
    k = 0
    for arr in (1, 0):
        for it in range(4):
            r = 8 + 16 * arr + 4 * it
            A("s_waitcnt lgkmcnt(%d)" % (14 - 2 * k)); k += 1
            A("buffer_store_dwordx4 %s, v6, s[12:15], s5 offen offset:%d" % (v(r, 4), 2048 * (it & 1) + 32 * arr))
            if it == 1: A("v_add_u32 v6, 4096, v6")
        if arr: A("v_subrev_u32 v6, 4096, v6")
    A.stamp(2); A.pend(0)
    A("s_endpgm")

ZSH = [0, 1, 2, 2, 3, 3, 3, 3]
ZRB = [0, 16, 25, 30, 35, 38, 41, 44]
RP = 528
def gen_kgen_tables(A, wr):
    for r in range(8, 14):
        A("v_lshlrev_b32 v%d, 16, v%d" % (r, r))
    A("""v_mov_b32 v14, s24
    v_mul_f32 v14, %s, v14
    v_mul_f32 v8, %s, v8
    v_exp_f32 v14, v14
    v_exp_f32 v8, v8
    v_max3_f32 v12, |v12|, |v13|, |v10|
    v_max_f32 v12, |v11|, v12""" % (f32(LOG2E), f32(LOG2E)))
    bf16r(A, 14, 14)
    bf16r(A, 8, 8)
    for sh in (8, 4, 2, 1):
        A("s_nop 1")
        A("v_max_f32_dpp v12, v12, v12 row_ror:%d row_mask:0xf bank_mask:0xf" % sh)
    A("""v_mul_f32 v8, v8, v14
    v_mul_f32 v9, v9, v14
    v_mov_b32 v13, v12
    v_mul_f32 v8, %s, v8
    s_nop 1
    v_permlane32_swap_b32 v12, v13
    v_mul_f32 v9, %s, v9
    v_max_f32 v12, v12, v13
    v_mov_b32 v13, v12
    s_nop 1
    v_permlane16_swap_b32 v12, v13
    s_nop 1
    v_max_f32 v12, v12, v13
    v_and_b32 v12, 0x7f800000, v12
    v_max_u32 v12, 0x0d800000, v12
    v_sub_u32 v13, 0x7f800000, v12
    v_mul_f32 v14, v14, v12""" % (f32(-LOG2E), f32(1.0 / (2 * 3.141592653589793))))
    A("v_mul_f32 v22, v10, v13\nv_mul_f32 v23, v11, v13")
    for (d, k) in ((16, 1), (18, 16), (20, 256)):
        A("v_mul_f32 v24, %s, v8" % f32(k))
        A("v_mul_f32 v25, %s, v9" % f32(k))
        A("v_exp_f32 v24, v24\nv_fract_f32 v25, v25\ns_nop 0")
        A("v_cos_f32 v%d, v25\nv_sin_f32 v%d, v25\ns_nop 0" % (d, d + 1))
        A("v_mul_f32 v%d, v%d, v24\nv_mul_f32 v%d, v%d, v24" % (d, d, d + 1, d + 1))
    E1, E16, E256, E2, E4, E8 = 16, 18, 20, 26, 28, 30
    Wt = [22, 32, 34, 36, 38, 40, 42, 44]
    cnt = [0]
    def put(row, x, neg):
        t = 60 + (cnt[0] & 3); cnt[0] += 1
        A("v_cvt_pk_f16_f32 v%d, v%d, %sv%d" % (t, x, "-" if neg else "", x + 1))
        A("ds_write_b32 v%d, v%d offset:%d" % (wr, t, row * RP))
    ch = []
    c0 = [(None, Wt[0], None, 0, 1)] + [(46, (Wt[0] if c == 1 else 46), E1, c, 1) for c in range(1, 16)]
    cv = [(None, 24, None, 47, 0), (None, E16, None, 48, 0)] + [(48, (E16 if m == 2 else 48), E16, 47 + m, 0) for m in range(2, 16)]
    cw = [(E2, E1, E1, None, 0), (Wt[1], Wt[0], E256, ZRB[1], 1), (E4, E2, E2, None, 0), (Wt[2], Wt[1], E256, ZRB[2], 1), (E8, E4, E4, None, 0)]
    cw += [(Wt[t], Wt[t - 1], E256, ZRB[t], 1) for t in range(3, 8)]
    for t in range(4, 8):
        cw += [(50, Wt[t], E8, ZRB[t] + 1, 1), (50, Wt[t], E16, ZRB[t] + 2, 1)]
    c1 = [None, None] + [(52, (Wt[1] if k == 1 else 52), E2, ZRB[1] + k, 1) for k in range(1, 9)]
    for t in (2, 3):
        c1 += [(52, (Wt[t] if k == 1 else 52), E4, ZRB[t] + k, 1) for k in range(1, 5)]
    A("v_mov_b32 v24, 1.0\nv_mov_b32 v25, 0")
    chains = [c0, cv, cw, c1]
    tmps = [54, 56, 58, 64]
    n = max(len(c) for c in chains)
    for i in range(n):
        st = [(c[i] if i < len(c) else None) for c in chains]
        for k, x in enumerate(st):
            if x and x[0] is not None:
                A("v_pk_mul_f32 %s, %s, %s op_sel:[0,0] op_sel_hi:[0,1]" % (v(tmps[k], 2), v(x[1], 2), v(x[2], 2)))
        for k, x in enumerate(st):
            if x and x[0] is not None:
                A("v_pk_fma_f32 %s, %s, %s, %s op_sel:[1,1,0] op_sel_hi:[1,0,1] neg_lo:[0,1,0]" % (v(x[0], 2), v(x[1], 2), v(x[2], 2), v(tmps[k], 2)))
        for k, x in enumerate(st):
            if x and x[3] is not None:
                put(x[3], x[0] if x[0] is not None else x[1], x[4])

def gen_kgen(A):
    A("""v_lshrrev_b32 v1, 6, v0
    v_and_b32 v2, 127, v0
    v_readfirstlane_b32 s5, v1
    s_lshr_b32 s6, s5, 1
    s_and_b32 s7, s5, 1
    s_lshl_b32 s4, s3, 1
    s_add_u32 s4, s4, s6
    s_lshl_b32 s25, s4, 8
    v_lshlrev_b32 v3, 1, v2
    v_xor_b32 v4, 128, v3
    buffer_load_ushort v8, v3, s[40:43], s25 offen
    buffer_load_ushort v9, v3, s[44:47], s25 offen
    buffer_load_ushort v10, v3, s[48:51], s25 offen
    buffer_load_ushort v11, v3, s[52:55], s25 offen
    buffer_load_ushort v12, v4, s[48:51], s25 offen
    buffer_load_ushort v13, v4, s[52:55], s25 offen
    s_mul_i32 s26, s6, 33280
    v_lshl_add_u32 v5, v2, 2, s26
    s_lshl_b32 s27, s24, 16
    s_and_b32 s24, s24, 0xffff0000
    s_cmp_eq_u32 s6, 0
    s_cselect_b32 s24, s27, s24""")
    A("""v_and_b32 v6, 15, v0
    v_sub_u32 v6, 15, v6
    v_bfe_u32 v7, v0, 4, 2
    s_cmp_eq_u32 s7, 0""")
    for tt in range(4):
        A("s_movk_i32 s28, %d\ns_cselect_b32 s28, %d, s28" % (256 * (tt + 4), 256 * tt))
        A("s_cselect_b32 s29, %d, %d" % (ZSH[tt], ZSH[tt + 4]))
        A("s_cselect_b32 s30, %d, %d" % (ZRB[tt], ZRB[tt + 4]))
        d = 66 + tt
        A("v_add_u32 v%d, s28, v6" % d)
        A("v_cvt_f32_u32 v%d, v%d" % (d, d))
        bf16r(A, d, d)
        A("v_cvt_u32_f32 v%d, v%d" % (d, d))
        A("v_subrev_u32 v%d, s28, v%d" % (d, d))
        A("v_lshrrev_b32 v%d, s29, v%d" % (d, d))
        A("v_add_u32 v%d, s30, v%d" % (d, d))
        A("v_mul_u32_u24 v%d, %d, v%d" % (d, RP, d))
        A("v_lshl_add_u32 v%d, v7, 4, v%d" % (d, d))
        A("v_add_u32 v%d, s26, v%d" % (d, d))
    A("""v_add_u32 v70, 47, v6
    v_mul_u32_u24 v70, %d, v70
    v_lshl_add_u32 v70, v7, 4, v70
    v_add_u32 v70, s26, v70
    v_and_b32 v71, 15, v0
    v_lshlrev_b32 v71, 5, v71
    v_lshl_add_u32 v71, v7, 3, v71
    s_mul_i32 s31, s4, %d
    s_add_u32 s31, s31, %d
    s_lshl_b32 s32, s7, 11
    s_sub_u32 s32, s31, s32
    s_waitcnt vmcnt(0)""" % (RP, KP, WS_KR))
    A.stamp(1)
    gen_kgen_tables(A, 5)
    A("s_waitcnt lgkmcnt(0)\ns_barrier")
    A.stamp(2)
    for ks in range(8):
        A("ds_read_b128 %s, v70 offset:%d" % (v(16 + 4 * ks, 4), 64 * ks))
    def rdA(tt):
        for ks in range(8):
            A("ds_read_b128 %s, v%d offset:%d" % (v(80 + 32 * (tt & 1) + 4 * ks, 4), 66 + tt, 64 * ks))
    rdA(0)
    for tt in range(4):
        if tt < 3: rdA(tt + 1)
        for ks in range(8):
            if tt < 3: A("s_waitcnt lgkmcnt(%d)" % (15 - ks))
            else: A("s_waitcnt lgkmcnt(%d)" % (7 - ks))
            A("v_mfma_f32_16x16x32_f16 %s, %s, %s, %s" % (v(48 + 4 * tt, 4), v(80 + 32 * (tt & 1) + 4 * ks, 4), v(16 + 4 * ks, 4), "0" if ks == 0 else v(48 + 4 * tt, 4)))
    A("s_nop 7\ns_nop 1")
    for tt in range(4):
        r = 48 + 4 * tt
        A("v_cvt_pk_f16_f32 v%d, v%d, v%d" % (r, r, r + 1))
        A("v_cvt_pk_f16_f32 v%d, v%d, v%d" % (r + 1, r + 2, r + 3))
        A("buffer_store_dwordx2 %s, v71, s[12:15], s32 offen offset:%d" % (v(r, 2), 3584 - 512 * tt))
    A("""v_and_b32 v6, 63, v0
    v_lshlrev_b32 v7, 3, v6
    v_mov_b32 v8, 0
    v_mov_b32 v9, 0
    s_add_u32 s31, s31, 4096
    s_lshl_b32 s33, s4, 2
    s_add_u32 s33, s33, %d
    s_mov_b64 exec, 0xff
    buffer_store_dwordx2 v[8:9], v7, s[12:15], s31 offen
    s_mov_b64 exec, 1
    buffer_store_dword v14, v7, s[12:15], s33 offen""" % WS_SC)
    A.stamp(3); A.pend(0)
    A("s_endpgm")

def gen_colsum(A):
    A("""s_cmp_lt_u32 s3, 8
    s_cselect_b32 s8, s16, s18
    s_cselect_b32 s9, s17, s19
    s_mov_b32 s10, 0x1c0000
    s_cselect_b32 s10, 0x80000, s10
    s_movk_i32 s4, 3584
    s_cselect_b32 s4, 1024, s4
    s_cselect_b32 s5, 0, 8
    s_mov_b32 s6, %d
    s_cselect_b32 s6, %d, s6
    s_and_b32 s9, s9, 0xffff
    s_mov_b32 s11, 0x20000
    s_sub_u32 s5, s3, s5
    s_lshl_b32 s7, s5, 7
    v_lshrrev_b32 v1, 3, v0
    v_and_b32 v2, 7, v0
    v_mul_lo_u32 v3, v1, s4
    v_lshl_add_u32 v3, v2, 4, v3
    s_lshl_b32 s4, s4, 5""" % (WS_CS3, WS_CS1))
    for p in range(16):
        A("buffer_load_dwordx4 %s, v3, s[8:11], s7 offen" % v(16 + 4 * p, 4))
        if p < 15: A("s_add_u32 s7, s7, s4")
    A("s_mov_b32 s20, 0x3f80\ns_mov_b32 s21, 0x3f800000")
    for j in range(8): A("v_mov_b32 v%d, 0" % (8 + j))
    for p in range(16):
        A("s_waitcnt vmcnt(%d)" % (15 - p))
        for e in range(4):
            A("v_dot2_f32_bf16 v%d, v%d, s20, v%d" % (8 + 2 * e, 16 + 4 * p + e, 8 + 2 * e))
            A("v_dot2_f32_bf16 v%d, v%d, s21, v%d" % (9 + 2 * e, 16 + 4 * p + e, 9 + 2 * e))
    A("""v_lshlrev_b32 v4, 5, v0
    s_nop 3
    ds_write_b128 v4, v[8:11]
    ds_write_b128 v4, v[12:15] offset:16
    s_waitcnt lgkmcnt(0)
    s_barrier
    v_cmp_gt_u32 vcc, 64, v0
    s_and_saveexec_b64 s[22:23], vcc
    s_cbranch_execz L_k1_end
    v_lshlrev_b32 v4, 2, v0""")
    for j in range(32):
        A("ds_read_b32 v%d, v4 offset:%d" % (16 + j, 256 * j))
    A("s_waitcnt lgkmcnt(0)")
    for st in (16, 8, 4, 2, 1):
        for j in range(st):
            A("v_add_f32 v%d, v%d, v%d" % (16 + j, 16 + j, 16 + j + st))
    A("""s_lshl_b32 s5, s5, 8
    s_add_u32 s5, s5, s6
    buffer_store_dword v16, v4, s[12:15], s5 offen""")
    A.pend(0)
    A("s_endpgm")

def gen_k1(A):
    A.l.append(".p2align 8"); A.label("k1_kernel")
    A.pstart()
    A("""s_cmp_ge_u32 s2, %d
    s_cbranch_scc1 L_k1_end
    s_load_dwordx2 s[6:7], s[0:1], 112
    s_cmp_ge_u32 s2, %d
    s_cbranch_scc1 L_k1_kgen
    s_cmp_ge_u32 s2, %d
    s_cbranch_scc1 L_k1_ln
    s_load_dwordx2 s[16:17], s[0:1], 64
    s_load_dwordx2 s[18:19], s[0:1], 80
    s_mov_b32 s3, s2
    s_waitcnt lgkmcnt(0)""" % (K1_GRID, K1_NCS + K1_NLN, K1_NCS))
    srd(A, 12, 6, WS_END)
    gen_colsum(A)
    A.label("L_k1_ln")
    A("s_load_dwordx2 s[4:5], s[0:1], 0\ns_sub_u32 s3, s2, %d\ns_waitcnt lgkmcnt(0)" % K1_NCS)
    srd(A, 8, 4, 0x200000); srd(A, 12, 6, WS_END)
    gen_ln1(A)
    A.label("L_k1_kgen")
    A("""s_load_dwordx8 s[56:63], s[0:1], 8
    s_load_dwordx2 s[4:5], s[0:1], 40
    s_sub_u32 s3, s2, %d
    s_lshl_b32 s8, s3, 2
    s_waitcnt lgkmcnt(0)
    s_load_dword s24, s[4:5], s8""" % (K1_NCS + K1_NLN))
    for i in range(4): srd(A, 40 + 4 * i, 56 + 2 * i, 0x20000)
    srd(A, 12, 6, WS_END)
    A("s_waitcnt lgkmcnt(0)")
    gen_kgen(A)
    A.label("L_k1_end")
    A("s_endpgm")
    return ("k1_kernel", K1_GRID, 256, K1_LDS, 144, 0)
```

```python
from g_base import *
K2_LDS = 34048 + 16384

def sched(A, loads, ops, per=2, maxout=14, pre=8):
    issued = []
    n_inst = [0]
    nxt = [0]
    done = [0]
    def issue(opi, lim):
        k = 0
        while nxt[0] < len(loads) and k < lim:
            L = loads[nxt[0]]
            if L["after"] >= opi: break
            if n_inst[0] - done[0] + len(L["txt"]) > maxout and lim < 99: break
            for t in L["txt"]: A(t)
            n_inst[0] += len(L["txt"]); issued.append(n_inst[0]); nxt[0] += 1; k += len(L["txt"])
    issue(0, pre)
    for i, o in enumerate(ops):
        m = max(o["need"]) if o["need"] else -1
        while nxt[0] <= m: issue(i, 99 if loads[nxt[0]]["after"] < i else 0) if False else issue1(A, loads, nxt, n_inst, issued)
        if m >= 0 and issued[m] > done[0]:
            A("s_waitcnt lgkmcnt(%d)" % min(15, n_inst[0] - issued[m])); done[0] = issued[m]
        A(o["txt"])
        issue(i + 1, per)
def issue1(A, loads, nxt, n_inst, issued):
    L = loads[nxt[0]]
    for t in L["txt"]: A(t)
    n_inst[0] += len(L["txt"]); issued.append(n_inst[0]); nxt[0] += 1

def conv_main(A, vA, vB, ACC, BR, AR):
    loads = []; ops = []; lidA = {}; lidB = {}; lastuse = {}
    NS = 4
    seq = []
    for q in range(32):
        for j in range(7, -1, -1):
            f = 4 * j + 3 - q
            if f >= 0: seq.append((q, j, f))
    for i, (q, j, f) in enumerate(seq): lastuse[q] = i
    for q in range(32):
        b, t = q >> 3, q & 7
        r = AR + 4 * (q % NS); o = 32 * (7 - t)
        lidA[q] = len(loads)
        loads.append(dict(txt=["ds_read2_b32 %s, v%d offset0:%d offset1:%d" % (v(r, 2), vA + b, o, o + 1),
                               "ds_read2_b32 %s, v%d offset0:%d offset1:%d" % (v(r + 2, 2), vA + b, o + 2, o + 3)],
                          after=(lastuse[q - NS] if q >= NS else -1)))
        if q < 4:
            for j in range(7, -1, -1):
                f = 4 * j + 3 - q
                lidB[f] = len(loads)
                loads.append(dict(txt=["ds_read_b128 %s, v%d offset:%d" % (v(BR + 4 * f, 4), vB, 128 * f)], after=-1))
    seen = set()
    for (q, j, f) in seq:
        c = v(ACC + 4 * j, 4) if j in seen else "0"
        seen.add(j)
        ops.append(dict(txt="v_mfma_f32_16x16x32_f16 %s, %s, %s, %s" % (v(ACC + 4 * j, 4), v(AR + 4 * (q % NS), 4), v(BR + 4 * f, 4), c), need=[lidA[q], lidB[f]]))
    sched(A, loads, ops)

def gen_k2(A):
    A.l.append(".p2align 8"); A.label("k2_kernel")
    A.pstart()
    A("""s_cmp_ge_u32 s2, 256
    s_cbranch_scc1 L_k2_end
    s_load_dwordx2 s[6:7], s[0:1], 112
    s_load_dwordx2 s[16:17], s[0:1], 48
    v_lshrrev_b32 v1, 6, v0
    v_and_b32 v2, 63, v0
    v_readfirstlane_b32 s5, v1
    s_and_b32 s3, s2, 7
    s_lshl_b32 s3, s3, 5
    s_lshr_b32 s4, s2, 3
    s_add_u32 s3, s3, s4
    s_lshr_b32 s8, s5, 1
    s_and_b32 s9, s5, 1
    s_lshl_b32 s4, s3, 1
    s_add_u32 s4, s4, s8
    s_mul_i32 s10, s8, 17024
    v_lshrrev_b32 v3, 1, v2
    v_lshlrev_b32 v3, 15, v3
    v_and_b32 v4, 1, v2
    v_lshl_add_u32 v3, v4, 4, v3
    v_lshlrev_b32 v4, 4, v2
    s_mul_i32 s18, s4, %d
    s_lshl_b32 s19, s9, 1
    s_sub_u32 s18, s18, s19
    s_add_u32 s18, s18, %d
    s_mul_i32 s19, s9, 4160
    s_add_u32 s19, s19, s10
    s_add_u32 s19, s19, 8704
    s_lshl_b32 s20, s4, 6
    s_lshl_b32 s21, s9, 21
    s_add_u32 s20, s20, s21
    s_lshl_b32 s21, s9, 11
    s_add_u32 s21, s21, s10
    s_lshl_b32 s22, s3, 2
    s_lshl_b32 s23, s4, 2
    s_add_u32 s23, s23, %d
    s_waitcnt lgkmcnt(0)""" % (KP, WS_KR + 2, WS_SC))
    srd(A, 12, 6, WS_END)
    A("""s_load_dword s24, s[16:17], s22
    s_load_dword s26, s[6:7], s23
    s_add_u32 m0, s21, 512
    s_add_u32 s25, s20, 0x100000
    buffer_load_dwordx4 v3, s[12:15], s20 offen lds
    s_add_u32 m0, s21, 1536
    s_add_u32 s20, s20, 32
    buffer_load_dwordx4 v3, s[12:15], s25 offen lds
    s_mov_b32 m0, s19
    s_add_u32 s25, s25, 32""")
    for i in range(4):
        A("buffer_load_dwordx4 v4, s[12:15], s18 offen offset:%d lds" % (1024 * i))
    A("""s_add_u32 m0, s21, 4608
    v_mov_b32 v8, 0
    buffer_load_dwordx4 v3, s[12:15], s20 offen lds
    s_add_u32 m0, s21, 5632
    v_mov_b32 v9, 0
    buffer_load_dwordx4 v3, s[12:15], s25 offen lds
    v_lshl_add_u32 v5, v2, 3, s10
    ds_write_b64 v5, v[8:9]
    v_and_b32 v6, 15, v2
    v_lshl_add_u32 v5, v6, 2, s19
    ds_write_b32 v5, v8 offset:4096
    v_bfe_u32 v7, v2, 4, 2
    v_and_b32 v10, 1, v2
    v_mul_u32_u24 v10, 4160, v10
    v_lshl_add_u32 v10, v7, 4, v10
    v_bfe_u32 v11, v2, 1, 3
    v_lshlrev_b32 v11, 2, v11
    v_sub_u32 v10, v10, v11
    s_lshl_b32 s27, s9, 6
    s_sub_u32 s28, s10, s27
    s_add_u32 s29, s28, %d
    v_add_u32 v12, s29, v10
    v_subrev_u32 v13, 1024, v12
    v_subrev_u32 v14, 2048, v12
    v_subrev_u32 v15, 3072, v12
    v_lshlrev_b32 v10, 5, v6
    v_lshl_add_u32 v11, v7, 4, v10
    s_add_u32 s28, s28, 96
    v_add_u32 v11, s28, v11
    v_lshl_add_u32 v10, v7, 3, v10
    s_waitcnt vmcnt(2) lgkmcnt(0)
    s_barrier""" % (8704 + 4060 - 64 * 14))
    A.stamp(1)
    conv_main(A, 12, 11, 32, 64, 16)
    A.stamp(2)
    A("""s_lshl_b32 s27, s5, 12
    s_add_u32 s27, s27, 34048
    v_add_u32 v5, s27, v4
    v_xor_b32 v6, 4096, v5
    v_add_u32 v7, s21, v10
    s_lshl_b32 s27, s24, 16
    s_and_b32 s24, s24, 0xffff0000
    s_cmp_eq_u32 s8, 0
    s_cselect_b32 s24, s27, s24
    s_mov_b32 s27, s26
    s_lshl_b32 s28, s4, 12
    s_lshl_b32 s29, s9, 11
    s_add_u32 s28, s28, s29
    s_add_u32 s28, s28, %d
    s_waitcnt vmcnt(0)
    s_nop 4
    s_cmp_eq_u32 s9, 0
    s_cbranch_scc1 L_k2_a""" % WS_HT)
    for t in range(4): A("ds_write_b128 v5, %s offset:%d" % (v(32 + 4 * t, 4), 1024 * t))
    for k in range(16): A("v_mov_b32 v%d, v%d" % (16 + k, 48 + k))
    A("s_branch L_k2_b")
    A.label("L_k2_a")
    for t in range(4): A("ds_write_b128 v5, %s offset:%d" % (v(48 + 4 * t, 4), 1024 * t))
    for k in range(16): A("v_mov_b32 v%d, v%d" % (16 + k, 32 + k))
    A.label("L_k2_b")
    A("s_waitcnt lgkmcnt(0)\ns_barrier")
    for t in range(4):
        A("ds_read_b128 %s, v6 offset:%d" % (v(64 + 4 * t, 4), 1024 * t))
        A("ds_read_b64 %s, v7 offset:%d" % (v(80 + 2 * t, 2), 4608 + 512 * t))
        A("ds_read_b64 %s, v7 offset:%d" % (v(88 + 2 * t, 2), 512 + 512 * t))
    for t in range(4):
        A("s_waitcnt lgkmcnt(%d)" % (9 - 3 * t))
        for h in range(2):
            r = 16 + 4 * t + 2 * h; x = 80 + 2 * t + h; u = 88 + 2 * t + h
            A("v_pk_add_f32 %s, %s, %s" % (v(r, 2), v(r, 2), v(64 + 4 * t + 2 * h, 2)))
            A("v_lshlrev_b32 v96, 16, v%d\nv_and_b32 v97, 0xffff0000, v%d" % (x, x))
            A("v_pk_fma_f32 %s, %s, s[26:27], v[96:97]" % (v(r, 2), v(r, 2)))
            A("v_fma_mix_f32 v%d, v%d, s24, v%d op_sel_hi:[1,0,0]" % (r, u, r))
            A("v_fma_mix_f32 v%d, v%d, s24, v%d op_sel:[1,0,0] op_sel_hi:[1,0,0]" % (r + 1, u, r + 1))
            A("v_cvt_pk_bf16_f32 v%d, v%d, v%d" % (98 + 2 * t + h, r, r + 1))
        A("buffer_store_dwordx2 %s, v10, s[12:15], s28 offen offset:%d" % (v(98 + 2 * t, 2), 512 * t))
    A.stamp(3); A.pend(1)
    A.label("L_k2_end")
    A("s_endpgm")
    return ("k2_kernel", 256, 256, K2_LDS, 192, 0)
```

```python
import sys
sys.path.insert(0, "work")
from hx import *
import gen, g_f2
from g_f2 import *
def buildf(path, prof=False, opt={}):
    gen.build([lambda A: gen_fused(A, opt)], path, prof)
    t = open(path).read().replace("; @launch kernel=%s_kernel " % NAME, "; @launch ")
    t = t.replace(".text\n", ".text\n.globl %s_kernel\n.type %s_kernel,@function\n" % (NAME, NAME), 1)
    open(path, "w").write(t)
    return path
def fo2(a, C):
    a = a.reshape(128, C // 32, 4, 16, 2, 4)
    return a.transpose(0, 3, 1, 4, 2, 5).reshape(2048, C)
def cmp(n, a, b):
    e = a - b
    print("%s: err max %.4g rms %.4g ref rms %.4g rel %.4g" % (n, np.abs(e).max(), np.sqrt((e ** 2).mean()), np.sqrt((b ** 2).mean()), np.sqrt((e ** 2).mean() / (b ** 2).mean())))
def check(r, z):
    R = lambda n, C=512: bf16_to_f32(z["t_" + n].reshape(2048, C))
    W = lambda off, C=512: bf16_to_f32(fo2(r.get_ws(off, np.uint16, (2048 * C,)), C))
    cmp("h", bf16_to_f32(r.get_ws(HT, np.uint16, (512, 2048))).T, R("h"))
    h1 = R("h1"); hs = np.zeros_like(h1)
    hs[1:, :128] = h1[:-1, :128]; hs[:-1, 128:256] = h1[1:, 128:256]; hs[2:, 256:384] = h1[:-2, 256:384]; hs[:-2, 384:] = h1[2:, 384:]
    cmp("h1s", W(H1), hs); cmp("x1", W(X1), R("x1")); cmp("h3", W(H3, 1792), R("h3", 1792))
    cmp("out", r.get_out(), bf16_to_f32(z["ref"].reshape(2048, 512)))
def prof(r, flush=True):
    r.reset(ws_bytes=WEND); r.sync()
    if flush: r.do_flush()
    r.launch(); r.sync()
    a = r.get_ws(PROF, np.uint32, (256, 8, 16)).astype(np.int64)
    t0 = a[:, :, 0].min()
    for nm, ws in (("C", [0, 1, 2, 3]), ("Bld", [4, 5]), ("Ald", [6, 7])):
        b = a[:, ws].reshape(-1, 16)
        out = []
        for s_ in range(16):
            c = b[:, s_]; c = c[c != 0]
            if len(c): out.append("%d:[%.2f %.2f %.2f]" % (s_, (c.min() - t0) / 100, (np.median(c) - t0) / 100, (c.max() - t0) / 100))
        print(nm, " ".join(out))
if __name__ == "__main__":
    if len(sys.argv) > 1:
        buildf(sys.argv[1]); sys.exit(0)
    z, inputs = load_ref(0)
    r = Runner(buildf("f.s"), inputs)
    r.reset(); r.launch(); r.sync()
    check(r, z)
    print("time", r.time(20))
    r.k.unload()
    r = Runner(buildf("fp.s", True), inputs)
    for it in range(3): prof(r); print()
```

```python
import g_base
from g_base import *
from g_k1 import rowstats, gen_kgen_tables, ZSH, ZRB, RP
from g_k2 import conv_main
from g_gemm import gelu8, gelu_consts, VM
HT, H1, X1, H3, P3, FLG, PROF, UX, WEND = 0, 0x200000, 0x400000, 0x600000, 0xD00000, 0xD60000, 0xD80000, 0xE00000, 0x1200000
g_base.WS_PROF = PROF
F1, F2, BL, BG = FLG, FLG + 0x1000, FLG + 0x2000, FLG + 0x3000
FL = {3: FLG + 0x4000, 4: FLG + 0x5000, 5: FLG + 0x6000}
FG = {3: FLG + 0x8000, 4: FLG + 0xC000, 5: FLG + 0x10000}
R0 = 65536; TB = R0 + 17408; RED = 98304
SYNCW = TB + 20 * RP + 512; TOKW = TB + 21 * RP + 512; LSW = TB + 22 * RP + 512; CNTW = LSW + 8
TP = 2080
SPIN = 100000
TOK = "s93"
NS = {1: 8, 2: 8, 3: 16, 4: 28}

W4ORD = [0, 7, 1, 8, 2, 9, 10, 4, 11, 14, 15, 21, 22, 3, 16, 23, 17, 24, 18, 25, 5, 12, 19, 26, 6, 13, 20, 27]
def schedule(opt):
    hA = {g: [None] * NS[g] for g in NS}; hB = {1: [8 + s for s in range(8)]}
    J = []
    def job(g, S, h, at, gate):
        hA[g][S] = h
        at = opt.get("at", {}).get((g, S), at)
        st = opt.get("stg", {}).get((g, S))
        if st: J.append(dict(g=g, S=S, h=h, pair=st[0], ld=st[1], wr=at, gate=gate))
        else: J.append(dict(g=g, S=S, h=h, pair="A", ld=at, wr=None, gate=gate))
    for s in range(8): job(1, s, s, "B0", "B2")
    for s in range(4): job(2, s, 16 + s, "B1", "E1")
    for s in range(4): job(2, 4 + s, s, (1, 2 + s), "E1")
    job(3, 0, 4, (1, 6), "X3"); job(3, 1, 5, (1, 7), "X3")
    for s in range(2, 12): job(3, s, 4 + s, opt.get("w3at", "E1"), "X3")
    for s in range(12, 16): job(3, s, 4 + s, "E2", "X3")
    for n, S in enumerate(W4ORD): job(4, S, 5 * (S // 7) + (S % 7) % 5, "M3" if n < 11 else "E3" if n < 20 else "Q1", "Q0" if n < 20 else "Q2")
    return hA, hB, J

def poll(A, vaddr, lanes, R=100):
    L = A.new("L_poll"); D = A.new("L_polld")
    A("s_mov_b32 exec_lo, %s\ns_mov_b32 exec_hi, 0\ns_mov_b32 s30, 0" % lanes)
    A.label(L)
    A("""buffer_load_dword v%d, v%d, s[12:15], 0 offen sc1
    s_add_u32 s30, s30, 1
    s_waitcnt vmcnt(0)
    v_cmp_ne_u32 vcc, %s, v%d
    s_cbranch_vccz %s
    s_cmp_lt_u32 s30, %d
    s_cbranch_scc1 %s""" % (R, vaddr, TOK, R, D, SPIN, L))
    A.label(D)
    A("s_mov_b64 exec, -1")

def pairsync(A, k, vo, vp, t):
    L = A.new("L_ps"); D = A.new("L_psd")
    A("v_mov_b32 v%d, %d\ns_waitcnt lgkmcnt(0)\nds_write_b32 v%d, v%d\ns_mov_b32 s30, 0" % (t, k, vo, t))
    A.label(L)
    A("""ds_read_b32 v%d, v%d
    s_add_u32 s30, s30, 1
    s_waitcnt lgkmcnt(0)
    v_readfirstlane_b32 s31, v%d
    s_cmp_ge_u32 s31, %d
    s_cbranch_scc1 %s
    s_cmp_lt_u32 s30, 0x%x
    s_cbranch_scc1 %s""" % (t, vp, t, k, D, SPIN * 16, L))
    A.label(D)

def setflag(A, k, idx4):
    A("""s_lshl_b32 s31, %s, 2
    v_mov_b32 v1, %d
    v_mov_b32 v3, %d
    v_mov_b32 v2, %s
    s_mov_b64 exec, 1
    s_waitcnt vmcnt(0)
    buffer_store_dword v2, v1, s[12:15], %s offen
    buffer_store_dword v2, v3, s[12:15], s31 offen sc1
    s_mov_b64 exec, -1""" % (idx4, FL[k], FG[k], TOK, idx4))

def allsync(A, base, k):
    F = A.new("L_fol"); D = A.new("L_asd"); L = A.new("L_pa"); L2 = A.new("L_pb"); X = A.new("L_pax")
    A("""s_lshl_b32 s18, s3, 8
    s_add_u32 s18, s18, %d
    s_mov_b32 s30, 0
    s_add_u32 s31, s4, s7
    s_cmp_lg_u32 s31, 0
    s_cbranch_scc1 %s
    v_lshlrev_b32 v7, 4, v0
    v_add_u32 v7, %d, v7""" % (k * 0x800, F, base))
    A.label(L)
    for i in range(4): A("buffer_load_dword v%d, v7, s[12:15], 0 offen offset:%d sc1" % (24 + i, 1024 * i))
    A("s_add_u32 s30, s30, 1\ns_waitcnt vmcnt(0)")
    for i in range(4): A("v_xor_b32 v%d, %s, v%d" % (24 + i, TOK, 24 + i))
    A("""v_or3_b32 v24, v24, v26, v27
    v_or_b32 v24, v24, v25
    v_cmp_lt_u32 vcc, 1, v24
    s_cbranch_vccz %s
    s_cmp_lt_u32 s30, %d
    s_cbranch_scc1 %s""" % (X, SPIN, L))
    A.label(X)
    A("""v_cmp_eq_u32 vcc, 1, v24
    s_cmp_lg_u64 vcc, 0
    s_cselect_b32 s92, 1, 0
    s_or_b32 s92, s92, %s
    v_mov_b32 v24, s92
    v_lshlrev_b32 v7, 2, v0
    v_add_u32 v25, %d, v7
    v_add_u32 v7, %d, v7
    s_mov_b32 exec_hi, 0
    buffer_store_dword v24, v25, s[12:15], s18 offen
    s_mov_b64 exec, 1
    buffer_store_dword v24, v7, s[12:15], s18 offen sc1
    s_branch %s""" % (TOK, BL, BG, D))
    A.label(F)
    A("""s_lshl_b32 s31, s91, 12
    s_add_u32 s31, s31, %d
    v_mov_b32 v7, s31
    s_mov_b64 exec, 1""" % BL)
    A.label(L2)
    A("""buffer_load_dword v24, v7, s[12:15], s18 offen sc1
    s_add_u32 s30, s30, 1
    s_waitcnt vmcnt(0)
    v_readfirstlane_b32 s92, v24
    s_xor_b32 s31, s92, %s
    s_cmp_le_u32 s31, 1
    s_cbranch_scc1 %s
    s_cmp_lt_u32 s30, %d
    s_cbranch_scc1 %s""" % (TOK, D, SPIN, L2))
    A.label(D)
    A("s_mov_b64 exec, -1")

def gen_loader(A, hA, hB, J, opt):
    UXC = opt.get("uxc", 0)
    if opt.get("prio", 1): A("s_setprio 3")
    A("""s_sub_u32 s6, s5, 4
    s_and_b32 s7, s6, 1
    s_lshl_b32 s26, s7, 12
    s_lshr_b32 s19, s4, 3
    s_lshl_b32 s18, s3, 2
    s_add_u32 s19, s19, s18
    s_and_b32 s20, s4, 7
    s_cmp_ge_u32 s4, 14
    s_cselect_b32 s21, 1, 0
    s_cselect_b32 s22, 14, 0
    s_sub_u32 s22, s4, s22
    s_lshl_b32 s18, s3, 1
    s_add_u32 s21, s21, s18
    s_cmp_ge_u32 s6, 2
    s_cbranch_scc1 L_aload
    v_lshlrev_b32 v3, 4, v0
    s_lshl_b32 s16, s2, 13
    s_add_u32 s16, s16, s26
    s_memrealtime s[60:61]
    s_getreg_b32 s59, hwreg(HW_REG_XCC_ID, 0, 4)
    s_lshl_b32 s17, s3, 2
    s_add_u32 s17, s17, 4
    s_add_u32 s59, s59, 1
    v_mul_u32_u24 v6, s17, v0
    v_lshlrev_b32 v5, 2, v0
    s_waitcnt lgkmcnt(0)""")
    srd(A, 8, 36, 0x200000); srd(A, 32, 50, 256)
    A("""s_or_b32 s60, s60, 2
    s_and_b32 s60, s60, -2
    s_add_u32 s31, s4, s7
    s_cmp_lg_u32 s31, 0
    s_cbranch_scc1 L_notok
    v_mov_b32 v104, s59
    v_writelane_b32 v104, s60, 0
    s_cmp_eq_u32 s2, 0
    s_cselect_b32 exec_lo, 3, 2
    s_mov_b32 exec_hi, 0
    buffer_store_dword v104, v6, s[32:35], 0 offen sc1
    s_mov_b64 exec, -1""")
    A.label("L_notok")
    for r in range(4): A("buffer_load_dwordx4 %s, v3, s[8:11], s16 offen offset:%d" % (v(16 + 4 * r, 4), 1024 * r))
    srd(A, 12, 52, WEND)
    A("""s_mov_b32 s24, 0x3f803f80
    s_mov_b32 s90, %s
    s_mul_i32 s18, s7, %d
    s_add_u32 s18, s18, %d
    v_lshl_add_u32 v8, v0, 5, s18
    v_bfe_u32 v9, v0, 2, 2
    v_mul_u32_u24 v9, %d, v9
    v_and_b32 v10, 3, v0
    v_lshl_add_u32 v9, v10, 3, v9
    v_lshrrev_b32 v11, 4, v0
    v_lshl_add_u32 v9, v11, 5, v9
    s_lshl_b32 s18, s7, 10
    s_add_u32 s18, s18, %d
    v_add_u32 v9, s18, v9
    %s
    s_add_u32 s16, s16, s18
    s_add_u32 s16, s16, %d
    s_lshl_b32 s18, s7, 2
    s_add_u32 s18, s18, %d
    v_mov_b32 v12, s18
    v_xor_b32 v13, 4, v12
    s_barrier""" % (f32(1.0 / 512), 4 * TP, R0, TP, R0, "v_lshlrev_b32 v10, 4, v0\ns_lshl_b32 s16, s7, 13\ns_lshl_b32 s18, s2, 14" if UXC else
      "v_lshrrev_b32 v11, 2, v0\nv_lshlrev_b32 v11, 14, v11\nv_lshl_add_u32 v10, v10, 4, v11\ns_lshl_b32 s16, s7, 21\ns_lshl_b32 s18, s2, 6", UX, LSW))
    for k in range(8): A("v_mov_b32 v%d, 0" % (96 + k))
    A("s_waitcnt vmcnt(0)\nbuffer_load_dword v104, v5, s[32:35], 0 offen sc1")
    BT = opt.get("bt", ())
    for g in BT:
        srd(A, 8, 38 + 2 * g, 0x80000)
        A("s_lshl_b32 s18, s4, 1\ns_add_u32 s18, s18, s7\ns_lshl_b32 s18, s18, 13\nv_lshlrev_b32 v7, 7, v0\nbuffer_load_dword v105, v7, s[8:11], s18 offen")
    A.stamp(1)
    for e in range(4):
        for r in range(4):
            x = 16 + 4 * r + e
            A("v_dot2_f32_bf16 v%d, v%d, s24, v%d" % (96 + r, x, 96 + r))
            A("v_dot2_f32_bf16 v%d, v%d, v%d, v%d" % (100 + r, x, x, 100 + r))
    for a in (96, 98, 100, 102): A("v_permlane32_swap_b32 v%d, v%d" % (a, a + 1))
    for a in (96, 98, 100, 102): A("v_add_f32 v%d, v%d, v%d" % (a, a, a + 1))
    A("v_permlane16_swap_b32 v96, v98\nv_permlane16_swap_b32 v100, v102\nv_add_f32 v96, v96, v98\nv_add_f32 v100, v100, v102")
    for sh in (8, 4, 2, 1):
        for a in (96, 100): A("v_add_f32_dpp v%d, v%d, v%d row_ror:%d row_mask:0xf bank_mask:0xf" % (a, a, a, sh))
    for r in range(4):
        for e in range(4):
            x = 16 + 4 * r + e; t = 32 + 8 * r + 2 * e
            A("v_lshlrev_b32 v%d, 16, v%d\nv_and_b32 v%d, 0xffff0000, v%d" % (t, x, t + 1, x))
            A("v_mov_b32 v%d, v%d" % (64 + 8 * r + 2 * e + 1, x))
    rowstats(A, 96, 100, 512, 97, 98, 99)
    A("v_mul_f32 v98, -v98, v99")
    for r in range(4):
        ln = 16 * [0, 2, 1, 3][r]
        A("v_readlane_b32 s%d, v98, %d\nv_readlane_b32 s%d, v99, %d" % (80 + 2 * r, ln, 81 + 2 * r, ln))
    for r in range(4):
        for e in range(4):
            t = 32 + 8 * r + 2 * e
            A("v_pk_fma_f32 %s, %s, %s, %s op_sel:[0,1,0] op_sel_hi:[1,1,0]" % (v(t, 2), v(t, 2), s(80 + 2 * r, 2), s(80 + 2 * r, 2)))
        for e in range(4):
            t = 32 + 8 * r + 2 * e
            A("v_cvt_pk_f16_f32 v%d, v%d, v%d" % (64 + 8 * r + 2 * e, t, t + 1))
        A("ds_write_b128 v8, %s offset:%d\nds_write_b128 v8, %s offset:%d" % (v(64 + 8 * r, 4), r * TP, v(68 + 8 * r, 4), r * TP + 16))
    pairsync(A, 1, 12, 13, 14)
    A.stamp(2)
    for j in range(8):
        A("ds_read_b64_tr_b16 %s, v9 offset:%d\nds_read_b64_tr_b16 %s, v9 offset:%d" % (v(16 + 4 * j, 2), 128 * j, v(18 + 4 * j, 2), 128 * j + 4 * TP))
    for j in range(8):
        A("s_waitcnt lgkmcnt(%d)" % (14 - 2 * j))
        A("buffer_store_dwordx4 %s, v10, s[12:15], s16 offen offset:%d sc1" % (v(16 + 4 * j, 4), 1024 * (j & 3) if UXC else 0))
        if UXC and j == 3: A("s_add_u32 s16, s16, 4096")
        if not UXC and j < 7: A("s_add_u32 s16, s16, 0x40000")
    A("""s_cmp_lg_u32 s7, 0
    s_cbranch_scc1 L_tokd
    s_mov_b32 s30, 0
    s_add_u32 s17, s3, 1
    s_waitcnt vmcnt(%d)""" % (8 + len(BT)))
    A.label("L_tok")
    A("""v_readlane_b32 %s, v104, 0
    v_readlane_b32 s91, v104, s17
    s_min_u32 s31, %s, s91
    s_cmp_lg_u32 s31, 0
    s_cbranch_scc1 L_tokx
    buffer_load_dword v104, v5, s[32:35], 0 offen sc1
    s_add_u32 s30, s30, 1
    s_waitcnt vmcnt(0)
    s_cmp_lt_u32 s30, %d
    s_cbranch_scc1 L_tok""" % (TOK, TOK, SPIN))
    A.label("L_tokx")
    A("""s_cmp_lg_u32 s91, s59
    s_cselect_b32 s91, 1, 0
    s_or_b32 s31, s91, %s
    v_mov_b32 v104, s31
    v_mov_b32 v7, %d
    ds_write_b32 v7, v104""" % (TOK, TOKW))
    A.label("L_tokd")
    A("s_waitcnt vmcnt(0)")
    pairsync(A, 2, 12, 13, 14)
    A("""s_cmp_lg_u32 s7, 0
    s_cbranch_scc1 L_nof1
    s_lshl_b32 s18, s2, 4
    v_mov_b32 v7, %d
    s_mov_b64 exec, 1
    buffer_store_dword v104, v7, s[12:15], s18 offen sc1
    s_mov_b64 exec, -1""" % F1)
    A.label("L_nof1")
    A("""v_mov_b32 v7, %d
    ds_read_b32 v104, v7
    v_mov_b32 v8, 0
    v_mov_b32 v9, 0
    s_mul_i32 s18, s7, 8704
    s_add_u32 s18, s18, %d
    v_lshl_add_u32 v7, v0, 3, s18
    ds_write_b64 v7, v[8:9]
    v_lshlrev_b32 v8, %d, v0
    s_lshl_b32 s16, s3, 5
    s_add_u32 s16, s16, s4
    s_lshl_b32 s16, s16, %d
    s_lshl_b32 s18, s7, %d
    s_add_u32 s16, s16, s18
    s_add_u32 s16, s16, %d
    s_add_u32 s17, s16, %d
    s_lshl_b32 s23, s7, 11
    s_waitcnt lgkmcnt(1)
    v_readfirstlane_b32 s31, v104
    s_and_b32 s91, s31, 1
    s_and_b32 %s, s31, -2""" % ((TOKW, R0) + ((14, 6, 21, UX, 0x100000 - 1024) if UXC else (6, 14, 13, UX, 3072)) + (TOK,)))
    A.stamp(3)
    allsync(A, F1, 0)
    A.stamp(4)
    for q in range(4):
        A("s_add_u32 m0, s23, %d" % (R0 + (q & 1) * 8704 + (512 if q < 2 else 4608)))
        A("buffer_load_dwordx4 v8, s[12:15], s16 offen lds\nbuffer_load_dwordx4 v8, s[12:15], s17 offen offset:1024 lds")
        if q < 3: A("s_add_u32 s16, s16, 16\ns_add_u32 s17, s17, 16")
    A("""s_lshl_b32 s31, s2, 1
    s_add_u32 s31, s31, s7
    s_cmp_lg_u32 s31, 0
    s_cbranch_scc1 L_nozd
    v_mov_b32 v9, 0
    s_mov_b64 exec, 0xffff
    buffer_store_dword v9, v5, s[32:35], 0 offen sc1
    s_mov_b64 exec, -1""")
    A.label("L_nozd")
    A("s_and_b32 s1, s92, 1\nv_mov_b32 v9, s1\nv_mov_b32 v7, %d\nds_write_b32 v7, v9" % (TOKW + 4))
    def trlane():
        A("""v_lshrrev_b32 v1, 3, v0
        v_and_b32 v2, 6, v1
        v_and_b32 v3, 7, v0
        v_xor_b32 v2, v2, v3
        v_lshlrev_b32 v2, 4, v2""")
    trlane()
    A("s_waitcnt vmcnt(0) lgkmcnt(0)")
    A.stamp(5)
    A("s_barrier\ns_setprio 0")
    def trvoff(pitch, r=8):
        A("v_mul_u32_u24 v%d, %d, v1\nv_add_u32 v%d, v%d, v2" % (r, pitch, r, r))
        for b in range(1, 4): A("v_add_u32 v%d, %d, v%d" % (r + b, b * (8 * pitch - 1024), r))
    wp = {1: 40, 2: 42, 3: 44, 4: 46}; wsz = {1: 0x80000, 2: 0x80000, 3: 0x1c0000, 4: 0x1c0000}
    tch = opt.get("touch", {})
    def wsetup():
        A("""s_lshl_b32 s54, s7, 15
        s_lshl_b32 s18, s20, 7
        s_add_u32 s54, s54, s18
        s_lshl_b32 s56, s7, 7
        s_lshl_b32 s18, s22, 8
        s_add_u32 s56, s56, s18
        v_lshl_add_u32 v28, v0, 4, s26
        v_add_u32 v29, 0x10000, v28
        v_add_u32 v30, 0x20000, v28""")
        trvoff(1024, 16); trvoff(3584, 20)
    def engine(P, bars, vm, last):
        cur = [None]; reg = {}; free = list(range(32, 240, 16)); dirty = [False]; reuse = set()
        mine = [j for j in J if j["pair"] == P]
        def setw(g):
            if cur[0] != g: srd(A, 8, wp[g], wsz[g]); cur[0] = g
        def load(j):
            g = j["g"]; setw(g)
            A("s_add_u32 s18, s%d, %d" % (56 if g == 3 else 54, j["S"] * (32 * 3584 if g == 3 else 65536)))
            if j["wr"] is None: A("s_add_u32 m0, s26, %d" % (j["h"] * 8192))
            else:
                reg[id(j)] = free.pop(0)
                if reg[id(j)] in reuse: A("s_waitcnt lgkmcnt(0)"); reuse.clear()
            for k in range(4):
                va = (20 if g == 3 else 16) + k
                if j["wr"] is None: A("buffer_load_dwordx4 v%d, s[8:11], s18 offen offset:%d lds" % (va, 1024 * k))
                else: A("buffer_load_dwordx4 %s, v%d, s[8:11], s18 offen offset:%d" % (v(reg[id(j)] + 4 * k, 4), va, 1024 * k))
            last[id(j)] = vm.add(4)
        def write(j):
            vm.wait(A, last[id(j)])
            for k in range(4):
                a_ = j["h"] * 8192 + 1024 * k
                A("ds_write_b128 v%d, %s offset:%d" % (28 + (a_ >> 16), v(reg[id(j)] + 4 * k, 4), a_ & 0xffff))
            dirty[0] = True; free.append(reg[id(j)]); reuse.add(reg[id(j)])
        def touch(gk):
            g, k = gk
            setw(g)
            if isinstance(k, (list, tuple)):
                k = list(k) + [k[-1]] * (8 - len(k))
                lo = sum(k[q] << (8 * q) for q in range(4)); hi = sum(k[4 + q] << (8 * q) for q in range(4))
                A("""s_mov_b32 s60, 0x%x
                s_mov_b32 s61, 0x%x
                s_lshl_b32 s18, s4, 1
                s_and_b32 s27, s18, 0x38
                s_lshr_b64 s[60:61], s[60:61], s27
                s_and_b32 s60, s60, 0xff
                s_and_b32 s18, s18, 6
                s_add_u32 s18, s18, s7
                s_lshl_b32 s60, s60, 3
                s_add_u32 s18, s18, s60
                s_lshl_b32 s18, s18, 13
                v_lshlrev_b32 v7, 7, v0
                buffer_load_dword v24, v7, s[8:11], s18 offen""" % (lo, hi)); vm.add(1)
                return
            n = wsz[g] // 128 // 64
            A("s_lshl_b32 s18, s4, 1\ns_add_u32 s18, s18, s7\ns_mul_i32 s18, s18, %d\ns_add_u32 s18, s18, %d\nv_lshlrev_b32 v7, 7, v0" % (n * 128, k * 8192))
            if n - 64 * k < 64: A("s_mov_b32 exec_hi, 0")
            A("buffer_load_dword v24, v7, s[8:11], s18 offen"); vm.add(1)
            if n - 64 * k < 64: A("s_mov_b64 exec, -1")
        def act(b, skip3=False):
            if P == "A" and b == "B1":
                for gk in tch.get(b, ()): touch(gk)
            for j in mine:
                if j["wr"] == b:
                    if skip3 and j["g"] == 3: free.append(reg[id(j)])
                    else: write(j)
            for j in mine:
                if j["ld"] == b:
                    if skip3 and j["g"] == 3:
                        if j["wr"] is not None: reg[id(j)] = free.pop(0)
                    else: load(j)
            if P == "A" and not skip3 and b != "B1":
                for gk in tch.get(b, ()): touch(gk)
        lastb = max(i for i, b in enumerate(bars) if i == 0 or b in last or any(b in (j["ld"], j["wr"], j["gate"]) for j in mine))
        if lastb >= bars.index("E2"): lastb = max(lastb, bars.index("Q0"))
        for i, b in enumerate(bars[:lastb + 1]):
            if b == "Q0":
                A.label("L_%s_g4" % P); A("s_waitcnt vmcnt(0) lgkmcnt(0)"); cur[0] = None
            else:
                w = [last[id(j)] for j in mine if j["gate"] == b and j["wr"] is None] + ([last[b]] if b in last else [])
                if w: vm.wait(A, max(w))
                if dirty[0] and any(j["gate"] == b for j in mine): A("s_waitcnt lgkmcnt(0)"); dirty[0] = False
            if b in ("~1", "~2", "~3"):
                if opt.get("sl" + b[1]): A("s_sleep %d" % opt["sl" + b[1]])
            elif i > 0: A("s_barrier")
            if b == "E2":
                A("s_cmp_lt_u32 s4, 28\ns_cbranch_scc1 L_%s_g3\ns_barrier" % P)
                sv = (vm.n, dict(last), cur[0], list(free), set(reuse), dict(reg), dirty[0])
                for bb in ("E2", "X3", "M3", "E3"): act(bb, True)
                A("s_branch L_%s_g4" % P)
                vm.n, cur[0], free[:], dirty[0] = sv[0], sv[2], sv[3], sv[6]; last.clear(); last.update(sv[1]); reuse.clear(); reuse.update(sv[4]); reg.clear(); reg.update(sv[5])
                A.label("L_%s_g3" % P)
            if b == "B1": A("s_setprio 0")
            act(b)
            if P == "A":
                for sl, gk in opt.get("pace", {}).get(b, ()):
                    while sl > 0: A("s_sleep %d" % min(sl, 127)); sl -= 127
                    touch(gk)
        A.pend(0)
        A("s_endpgm")
    tail = [(1, s_) for s_ in range(8)] + ["E1", "G2", "R2", "E2", "X3", "M3", "E3", "Q0", "Q1", "Q2"]
    vm = VM(); last = {}
    trvoff(4096)
    wsetup()
    A("""s_lshl_b32 s25, s7, 17
    s_lshl_b32 s18, s19, 7
    s_add_u32 s25, s25, s18
    s_barrier""")
    A.stamp(6); allsync(A, F2, 1); A.stamp(7)
    for s_ in range(8):
        A("s_add_u32 m0, s26, %d" % (hB[1][s_] * 8192))
        for k in range(4): A("buffer_load_dwordx4 v%d, s[12:15], s25 offen offset:%d lds" % (8 + k, 1024 * k))
        A("s_add_u32 s25, s25, %d" % (64 * 4096))
        last[(1, s_)] = vm.add(4)
    engine("B", ["P1"] + tail, vm, last)
    A.label("L_aload")
    A("s_barrier")
    trlane()
    wsetup()
    A("s_waitcnt lgkmcnt(0)")
    NL = opt.get("cpf_nl", 6)
    A("s_getpc_b64 s[58:59]")
    A.label("L_pc")
    A("""s_lshl_b32 s18, s4, 1
    s_add_u32 s18, s18, s7
    s_mul_i32 s18, s18, %d
    s_sub_u32 s58, s58, L_pc-%s_kernel
    s_subb_u32 s59, s59, 0
    s_min_u32 s18, s18, L_codeend-%s_kernel-%d""" % (NL * 128, NAME, NAME, NL * 128))
    for k in range(2 * NL): A("s_load_dword s%d, s[58:59], s18 offset:%d" % (80 + k, 64 * k))
    srd(A, 12, 52, WEND)
    engine("A", ["B0", "~1", "~2", "~3", "B1", "B2"] + tail, VM(), {})

FA, FB, ACC, CS, PS, RES, HF = 32, 96, 160, 136, 112, 224, 240
def tr_bases(A, dst, nu, ubase_s, extra_s=None, nr=3):
    A("""v_lshrrev_b32 v1, 2, v0
    v_lshlrev_b32 v1, 7, v1
    v_and_b32 v2, 3, v0
    v_lshl_add_u32 v1, v2, 3, v1
    v_bfe_u32 v2, v0, 3, 2""")
    if ubase_s: A("v_xor_b32 v2, %s, v2" % ubase_s)
    if extra_s: A("v_add_u32 v1, %s, v1" % extra_s)
    A("v_lshl_add_u32 v%d, v2, 5, v1" % dst)
    for k in range(1, nu): A("v_xor_b32 v%d, %d, v%d" % (dst + k, 32 * k, dst))
    for rg in range(1, nr):
        for k in range(nu): A("v_add_u32 v%d, 0x%x, v%d" % (dst + rg * nu + k, rg << 16, dst + k))

def gemm_main(A, g, hA, hB, init):
    F = 4 if g == 3 else 2
    SPS = 1 if g == 3 else 2
    nsteps = NS[g] * SPS
    vRA, vRB = 8, 20
    btr = g == 1
    def off(h, o):
        a = h * 8192 + o
        return a >> 16, a & 0xffff
    def reads(t):
        st, ks = t // SPS, t % SPS
        b = t & 1; la = []; lb = []
        for fn in range(F):
            d = FB + (b * F + fn) * 4
            if btr:
                for hh in range(2):
                    rg, o = off(hB[g][st], 4096 * ks + 2048 * hh)
                    lb.append("ds_read_b64_tr_b16 %s, v%d offset:%d" % (v(d + 2 * hh, 2), vRB + rg * 2 + fn, o))
            else:
                rg, o = off(hB[g][st], (1024 * fn) if g == 3 else (1024 * ks + 2048 * fn))
                lb.append("ds_read_b128 %s, v%d offset:%d" % (v(d, 4), vRB + rg, o))
        for fm in range(F):
            d = FA + (b * F + fm) * 4
            for hh in range(2):
                rg, o = off(hA[g][st], 4096 * ks + 2048 * hh)
                la.append("ds_read_b64_tr_b16 %s, v%d offset:%d" % (v(d + 2 * hh, 2), vRA + rg * F + fm, o))
        return lb + la
    def mfmas(t):
        b = t & 1; M = []
        if g == 1:
            for fn in range(F):
                fb = v(FB + (b * F + fn) * 4, 4)
                M.append("v_mfma_f32_16x16x32_bf16 %s, %s, %s, %s" % (v(PS + 4 * fn, 4), v(PS + 16, 4), fb, "0" if t == 0 else v(PS + 4 * fn, 4)))
                M.append("v_mfma_f32_16x16x32_bf16 %s, %s, %s, %s" % (v(PS + 8 + 4 * fn, 4), fb, fb, "0" if t == 0 else v(PS + 8 + 4 * fn, 4)))
        for fm in range(F):
            for fn in range(F):
                c = ACC + (fm * F + fn) * 4
                c0 = v(RES + (fm * F + fn) * 4, 4) if init else "0"
                M.append("v_mfma_f32_16x16x32_bf16 %s, %s, %s, %s" % (v(c, 4), v(FA + (b * F + fm) * 4, 4), v(FB + (b * F + fn) * 4, 4), c0 if t == 0 else v(c, 4)))
        return M
    A("s_barrier")
    for r in reads(0): A(r)
    hooks = init_hooks.get(g)
    if hooks: hooks(A)
    for t in range(nsteps):
        if (t + 1 < nsteps) and ((t + 1) % SPS == 0): A("s_barrier")
        R = reads(t + 1) if t + 1 < nsteps else []
        M = mfmas(t)
        A("s_waitcnt lgkmcnt(0)")
        if GS[0] == g and t % GS[1] == 0 and t // GS[1] < 8: A.stamp(1 + t // GS[1])
        for i, m in enumerate(M):
            A(m)
            for r in R[2 * i:2 * i + 2]: A(r)
        assert 2 * len(M) >= len(R)
init_hooks = {}
GS = [0, 1]

def cpoll(A, k, lanes, remote=None):
    A("""v_lshlrev_b32 v2, 4, v1
    v_add_u32 v2, %d, v2
    v_lshlrev_b32 v1, 2, v1
    v_add_u32 v1, %d, v1
    s_cmp_eq_u32 s1, 0
    s_cselect_b64 vcc, %s, -1
    v_cndmask_b32 v1, v1, v2, vcc""" % (FG[k], FL[k], remote or "0"))
    poll(A, 1, lanes)

def gemm_dir(A, g, hA, pre=None):
    ks = g != 3
    n = {2: 4, 3: 16, 4: 14}[g]
    NM, NN = (4, 4) if ks else (8, 2)
    RB = 64 if ks else FB
    D = 6 if ks else 8
    vm = VM(); ld = {}
    def acc(fm, fn):
        if not ks: return ACC + (fm * 2 + fn) * 4
        return ACC + 16 * ((fm >> 1) + 2 * (fn >> 1)) + ((fm & 1) * 2 + (fn & 1)) * 4
    def fb(t, fn): return RB + ((t % D) * NN + fn) * 4
    def ldB(t, fn):
        A("buffer_load_dwordx4 %s, v5, s[12:15], s%d offen offset:%d" % (v(fb(t, fn), 4), 40 + fn, 1024 * (t & 3)))
        if t & 3 == 3 and t + 1 < n: A("s_add_u32 s%d, s%d, 4096" % (40 + fn, 40 + fn))
        ld[(t, fn)] = vm.add(1)
    def rdA(t):
        L = []
        for fm in range(NM):
            for hh in range(2):
                if ks: rg, o = 0, 8192 * ((t >> 1) % 5) + 4096 * (t & 1) + 2048 * hh
                else:
                    a_ = hA[g][t] * 8192 + 4096 * (fm >> 2) + 2048 * hh; rg, o = a_ >> 16, a_ & 0xffff
                L.append("ds_read_b64_tr_b16 %s, v%d offset:%d" % (v(FA + ((t & 1) * NM + fm) * 4 + 2 * hh, 2), 8 + rg * 4 + (fm & 3), o))
        return L
    for r in rdA(0): A(r)
    if pre: pre()
    for t in range(min(D, n)):
        for fn in range(NN): ldB(t, fn)
    if g == 3:
        for q in range(4): A("buffer_load_dwordx4 %s, v3, s[12:15], s35 offen offset:%d" % (v(HF + 4 * q, 4), 2048 * (q >> 1) + 16 * (q & 1))); vm.add(1)
    if g == 2: A("s_barrier")
    bar = {3: (8,), 4: (4, 9), 2: ()}[g]
    for t in range(n):
        R = rdA(t + 1) if t + 1 < n else []
        if g == 3 and t == n - 1: R = ["ds_read_b128 %s, v5 offset:%d" % (v(FA + 4 * i, 4), 3 * 8192 + 1024 * i) for i in range(8)]
        if ks: A("s_waitcnt lgkmcnt(0)")
        if t in bar: A("s_waitcnt lgkmcnt(0)\ns_barrier")
        if GS[0] == g and t % GS[1] == 0 and t // GS[1] < 8: A.stamp(1 + t // GS[1])
        order = [(fm, fn) for fn in range(NN) for fm in range(NM)] if ks else [(fm, fn) for fm in range(NM) for fn in range(NN)]
        for i, (fm, fn) in enumerate(order):
            if (fm == 0): vm.wait(A, ld[(t, fn)])
            if not ks and fn == 0: A("s_waitcnt lgkmcnt(%d)" % min(15, 14 - 2 * fm + min(i, len(R))))
            c = acc(fm, fn)
            c0 = v(RES + c - ACC, 4) if (ks and c < ACC + 16) else "0"
            A("v_mfma_f32_16x16x32_bf16 %s, %s, %s, %s" % (v(c, 4), v(FA + ((t & 1) * NM + fm) * 4, 4), v(fb(t, fn), 4), c0 if t == 0 else v(c, 4)))
            if i < len(R): A(R[i])
            if fm == NM - 1 and t + D < n: ldB(t + D, fn)
    if ks:
        for q in range(1, 4):
            for i in range(4): A("ds_write_b128 v12, %s offset:%d" % (v(ACC + 16 * q + 4 * i, 4), 4096 * (q - 1) + 1024 * i))
        A("s_waitcnt lgkmcnt(0)\ns_barrier")
        for q in range(1, 4):
            for i in range(4): A("ds_read_b128 %s, v%d offset:%d" % (v(RB + 16 * (q - 1) + 4 * i, 4), 12 + q, 4096 * (q - 1) + 1024 * i))
        for q in range(1, 4):
            for i in range(4):
                A("s_waitcnt lgkmcnt(%d)" % (11 - 4 * (q - 1) - i))
                for h in range(2):
                    A("v_pk_add_f32 %s, %s, %s" % (v(ACC + 4 * i + 2 * h, 2), v(ACC + 4 * i + 2 * h, 2), v(RB + 16 * (q - 1) + 4 * i + 2 * h, 2)))

def ks_setup(A, g):
    C = 512 if g == 2 else 1792
    for q in range(4):
        A("s_xor_b32 s18, s5, %d" % q)
        if g == 2: A("s_xor_b32 s18, s18, 2\ns_lshr_b32 s24, s18, 1\ns_and_b32 s18, s18, 1\ns_lshl_b32 s24, s24, 17\ns_lshl_b32 s18, s18, 14\ns_add_u32 s18, s18, s24")
        else: A("s_mul_i32 s18, s18, 40960")
        A("v_add_u32 v%d, s18, v5" % (12 + q))
        if q == 0: A("s_mov_b32 s27, s18")
    A("s_lshl_b32 s24, s21, 1")
    tr_bases(A, 8, 4, "s24", "s27", 1)
    A("""s_lshl_b32 s18, s19, 2
    s_lshl_b32 s24, s22, 1
    s_add_u32 s18, s18, s24
    s_mul_i32 s40, s18, %d
    s_xor_b32 s18, s18, 2
    s_mul_i32 s42, s18, %d
    s_mul_i32 s18, s5, %d
    s_add_u32 s18, s18, %d
    s_add_u32 s40, s40, s18
    s_add_u32 s42, s42, s18
    s_add_u32 s41, s40, %d
    s_add_u32 s43, s42, %d""" % (32 * C, 32 * C, 8 * C, H1 if g == 2 else H3, 32 * C, 32 * C))

def colsum(A, g, hA):
    F = 2
    SPS = 1 if g == 3 else 2
    vb = 20 if g == 3 else 8
    for i in range(4): A("v_mov_b32 v%d, 0x3f803f80" % (PS + 16 + i))
    n = NS[g] * SPS
    def rd(t):
        for fm in range(F):
            for hh in range(2):
                a = hA[g][t // SPS] * 8192 + 4096 * (t % SPS) + 2048 * hh
                A("ds_read_b64_tr_b16 %s, v%d offset:%d" % (v(FA + ((t & 3) * F + fm) * 4 + 2 * hh, 2), vb + (a >> 16) * F + fm, a & 0xffff))
    rd(0); rd(1); rd(2)
    for t in range(n):
        if t + 3 < n: rd(t + 3)
        A("s_waitcnt lgkmcnt(%d)" % (2 * F * min(3, n - 1 - t)))
        for fm in range(F):
            A("v_mfma_f32_16x16x32_bf16 %s, %s, %s, %s" % (v(CS + 4 * fm, 4), v(FA + ((t & 3) * F + fm) * 4, 4), v(PS + 16, 4), "0" if t == 0 else v(CS + 4 * fm, 4)))

def gen_compute(A, hA, hB, opt):
    A("""s_lshr_b32 s6, s5, 1
    s_and_b32 s7, s5, 1
    s_lshl_b32 s16, s3, 6
    s_lshl_b32 s17, s4, 1
    s_add_u32 s16, s16, s17
    s_add_u32 s16, s16, s6
    s_lshl_b32 s25, s16, 8
    s_lshl_b32 s17, s16, 1
    v_lshl_add_u32 v2, s7, 6, v0
    v_lshlrev_b32 v3, 1, v2
    v_xor_b32 v4, 128, v3
    v_mov_b32 v6, 0
    s_waitcnt lgkmcnt(0)""")
    for i, r in enumerate((8, 9, 10, 11)):
        srd(A, 8, 38 + 2 * i, 0x20000)
        A("buffer_load_ushort v%d, v3, s[8:11], s25 offen" % r)
        if i >= 2: A("buffer_load_ushort v%d, v4, s[8:11], s25 offen" % (r + 2))
    srd(A, 8, 46, 1024); A("buffer_load_ushort v15, v6, s[8:11], s17 offen")
    srd(A, 8, 48, 1024); A("buffer_load_ushort v72, v6, s[8:11], s17 offen")
    srd(A, 12, 52, WEND)
    A("""s_barrier
    s_mul_i32 s26, s6, 33280
    s_add_u32 s26, s26, %d
    v_lshl_add_u32 v5, v2, 2, s26
    v_and_b32 v6, 15, v0
    v_sub_u32 v6, 15, v6
    v_bfe_u32 v7, v0, 4, 2
    s_lshl_b32 s18, s5, 2
    s_add_u32 s18, s18, %d
    v_mov_b32 v73, s18
    v_xor_b32 v74, 4, v73
    s_cmp_eq_u32 s7, 0""" % (TB, SYNCW))
    for tt in range(4):
        A("s_movk_i32 s28, %d\ns_cselect_b32 s28, %d, s28" % (256 * (tt + 4), 256 * tt))
        A("s_cselect_b32 s29, %d, %d" % (ZSH[tt], ZSH[tt + 4]))
        A("s_cselect_b32 s30, %d, %d" % (ZRB[tt], ZRB[tt + 4]))
        d = 66 + tt
        A("v_add_u32 v%d, s28, v6\nv_cvt_f32_u32 v%d, v%d" % (d, d, d))
        bf16r(A, d, d)
        A("v_cvt_u32_f32 v%d, v%d\nv_subrev_u32 v%d, s28, v%d\nv_lshrrev_b32 v%d, s29, v%d\nv_add_u32 v%d, s30, v%d" % ((d,) * 8))
        A("v_mul_u32_u24 v%d, %d, v%d\nv_lshl_add_u32 v%d, v7, 4, v%d\nv_add_u32 v%d, s26, v%d" % (d, RP, d, d, d, d, d))
    A("""v_add_u32 v70, 47, v6
    v_mul_u32_u24 v70, %d, v70
    v_lshl_add_u32 v70, v7, 4, v70
    v_add_u32 v70, s26, v70
    v_and_b32 v71, 15, v0
    v_lshlrev_b32 v71, 5, v71
    v_lshl_add_u32 v71, v7, 3, v71
    s_waitcnt vmcnt(0)
    v_lshlrev_b32 v15, 16, v15
    v_lshlrev_b32 v72, 16, v72
    s_nop 0
    v_readfirstlane_b32 s24, v15
    v_readfirstlane_b32 s23, v72""" % RP)
    A.stamp(1)
    gen_kgen_tables(A, 5)
    pairsync(A, 1, 73, 74, 75)
    A.stamp(2)
    for ks in range(8): A("ds_read_b128 %s, v70 offset:%d" % (v(16 + 4 * ks, 4), 64 * ks))
    def rdA(tt):
        for ks in range(8): A("ds_read_b128 %s, v%d offset:%d" % (v(80 + 32 * (tt & 1) + 4 * ks, 4), 66 + tt, 64 * ks))
    rdA(0)
    for tt in range(4):
        if tt < 3: rdA(tt + 1)
        for ks in range(8):
            A("s_waitcnt lgkmcnt(%d)" % ((15 if tt < 3 else 7) - ks))
            A("v_mfma_f32_16x16x32_f16 %s, %s, %s, %s" % (v(48 + 4 * tt, 4), v(80 + 32 * (tt & 1) + 4 * ks, 4), v(16 + 4 * ks, 4), "0" if ks == 0 else v(48 + 4 * tt, 4)))
    A("v_readfirstlane_b32 s26, v14\ns_mul_i32 s10, s6, 33280\ns_add_u32 s10, s10, %d" % TB)
    pairsync(A, 2, 73, 74, 75)
    A("""s_mov_b32 s27, s26
    s_lshl_b32 s18, s7, 11
    s_sub_u32 s18, s10, s18
    v_add_u32 v76, s18, v71
    v_mov_b32 v8, 0
    v_and_b32 v9, 15, v0
    s_mul_i32 s18, s7, 4160
    s_add_u32 s18, s18, s10
    v_lshl_add_u32 v9, v9, 2, s18""")
    for tt in range(4):
        r = 48 + 4 * tt; o = 3584 - 512 * tt
        A("v_cvt_pk_f16_f32 v16, v%d, v%d\nv_cvt_pk_f16_f32 v17, v%d, v%d\nv_cvt_pk_f16_f32 v18, v%d, v%d" % (r, r + 1, r + 2, r + 3, r + 1, r + 2))
        A("ds_write_b64 v76, v[16:17] offset:%d" % (4160 + o))
        A("ds_write_b32 v76, v18 offset:%d" % o)
        A("ds_write_b16_d16_hi v76, v17 offset:%d" % (o + 4))
        if tt == 3: A("v_subrev_u32 v77, 2, v76\nds_write_b16 v77, v16 offset:%d" % o)
        else: A("ds_write_b16 v76, v16 offset:%d" % (o - 2))
    A("""ds_write_b32 v9, v8 offset:4096
    v_mov_b32 v9, s10
    ds_write_b16 v9, v8 offset:4094
    v_and_b32 v6, 15, v0
    v_and_b32 v10, 1, v0
    v_mul_u32_u24 v10, 4160, v10
    v_lshl_add_u32 v10, v7, 4, v10
    v_bfe_u32 v11, v0, 1, 3
    v_lshlrev_b32 v11, 2, v11
    v_sub_u32 v10, v10, v11
    s_lshl_b32 s18, s7, 6
    s_sub_u32 s29, s10, s18
    s_add_u32 s29, s29, %d
    v_add_u32 v12, s29, v10
    v_subrev_u32 v13, 1024, v12
    v_subrev_u32 v14, 2048, v12
    v_subrev_u32 v15, 3072, v12
    s_mul_i32 s21, s6, 8704
    s_add_u32 s21, s21, %d
    s_sub_u32 s28, s21, s18
    s_add_u32 s28, s28, 96
    v_lshlrev_b32 v10, 5, v6
    v_lshl_add_u32 v11, v7, 4, v10
    v_add_u32 v11, s28, v11
    v_lshl_add_u32 v10, v7, 3, v10
    s_lshl_b32 s18, s7, 11
    s_add_u32 s21, s21, s18
    v_mov_b32 v8, v73
    v_mov_b32 v9, v74
    s_waitcnt lgkmcnt(0)""" % (4060 - 64 * 14, R0))
    A.stamp(1)
    A("s_barrier")
    A("v_mov_b32 v1, %d\nds_read_b64 v[2:3], v1\ns_waitcnt lgkmcnt(0)\nv_readfirstlane_b32 %s, v2\nv_readfirstlane_b32 s1, v3\ns_and_b32 %s, %s, -2" % (TOKW, TOK, TOK, TOK))
    A.stamp(4)
    conv_main(A, 12, 11, 32, 64, 16)
    A.stamp(5)
    A("""s_lshl_b32 s18, s5, 12
    s_add_u32 s18, s18, %d
    v_lshl_add_u32 v5, v0, 4, s18
    v_xor_b32 v6, 4096, v5
    v_add_u32 v7, s21, v10
    s_lshl_b32 s28, s16, 12
    s_lshl_b32 s29, s7, 11
    s_add_u32 s28, s28, s29
    s_nop 4
    s_cmp_eq_u32 s7, 0
    s_cbranch_scc1 L_cv_a""" % RED)
    for t in range(4): A("ds_write_b128 v5, %s offset:%d" % (v(32 + 4 * t, 4), 1024 * t))
    for k in range(16): A("v_mov_b32 v%d, v%d" % (16 + k, 48 + k))
    A("s_branch L_cv_b")
    A.label("L_cv_a")
    for t in range(4): A("ds_write_b128 v5, %s offset:%d" % (v(48 + 4 * t, 4), 1024 * t))
    for k in range(16): A("v_mov_b32 v%d, v%d" % (16 + k, 32 + k))
    A.label("L_cv_b")
    for t in range(4):
        A("ds_read_b64 %s, v7 offset:%d" % (v(80 + 2 * t, 2), 4608 + 512 * t))
        A("ds_read_b64 %s, v7 offset:%d" % (v(88 + 2 * t, 2), 512 + 512 * t))
    pairsync(A, 3, 8, 9, 100)
    for t in range(4): A("ds_read_b128 %s, v6 offset:%d" % (v(64 + 4 * t, 4), 1024 * t))
    for t in range(4):
        A("s_waitcnt lgkmcnt(%d)" % (3 - t))
        for h in range(2):
            r = 16 + 4 * t + 2 * h; x = 80 + 2 * t + h; u = 88 + 2 * t + h
            A("v_pk_add_f32 %s, %s, %s" % (v(r, 2), v(r, 2), v(64 + 4 * t + 2 * h, 2)))
            A("v_lshlrev_b32 v96, 16, v%d\nv_and_b32 v97, 0xffff0000, v%d" % (x, x))
            A("v_pk_fma_f32 %s, %s, s[26:27], v[96:97]" % (v(r, 2), v(r, 2)))
            A("v_fma_mix_f32 v%d, v%d, s23, v%d op_sel_hi:[1,0,0]" % (r, u, r))
            A("v_fma_mix_f32 v%d, v%d, s23, v%d op_sel:[1,0,0] op_sel_hi:[1,0,0]" % (r + 1, u, r + 1))
            A("v_cvt_pk_bf16_f32 v%d, v%d, v%d" % (98 + 2 * t + h, r, r + 1))
        A("buffer_store_dwordx2 %s, v10, s[12:15], s28 offen offset:%d sc1" % (v(98 + 2 * t, 2), 512 * t))
    A.stamp(6)
    A("""v_mov_b32 v1, %d
    v_mov_b32 v2, 1
    s_mov_b64 exec, 1
    s_waitcnt vmcnt(0)
    ds_add_rtn_u32 v2, v1, v2
    v_mov_b32 v1, %d
    s_lshl_b32 s18, s2, 4
    s_waitcnt lgkmcnt(0)
    v_readfirstlane_b32 s19, v2
    v_mov_b32 v2, %s
    s_cmp_lg_u32 s19, 3
    s_cbranch_scc1 L_nof2
    buffer_store_dword v2, v1, s[12:15], s18 offen sc1""" % (CNTW, F2, TOK))
    A.label("L_nof2")
    A("s_mov_b64 exec, -1")
    A.stamp(7)
    A("""s_and_b32 s21, s5, 1
    s_lshr_b32 s22, s5, 1
    s_lshr_b32 s19, s4, 3
    s_lshl_b32 s18, s3, 2
    s_add_u32 s19, s19, s18
    s_and_b32 s20, s4, 7
    s_lshl_b32 s29, s19, 6
    s_lshl_b32 s18, s22, 5
    s_add_u32 s29, s29, s18
    s_lshl_b32 s17, s20, 1
    s_add_u32 s17, s17, s21
    s_lshl_b32 s16, s29, 10
    s_lshl_b32 s18, s17, 10
    s_add_u32 s16, s16, s18
    s_lshl_b32 s24, s21, 1
    s_lshl_b32 s25, s22, 1
    s_lshl_b32 s23, s19, 5
    s_lshl_b32 s18, s22, 4
    s_add_u32 s23, s23, s18
    s_add_u32 s23, s23, s17
    s_lshl_b32 s23, s23, 2
    v_lshrrev_b32 v4, 4, v0
    v_lshlrev_b32 v5, 4, v0
    v_and_b32 v7, 15, v0
    s_mov_b32 s90, %s""" % f32(1.0 / 512))
    tr_bases(A, 8, 2, "s24")
    tr_bases(A, 20, 2, "s25")
    A("s_barrier")
    colsum(A, 1, hA)
    A.stamp(8)
    gemm_main(A, 1, hA, hB, False)
    assert hB[1] == list(range(8, 16))
    A("s_lshl_b32 s18, s17, 12\ns_add_u32 s18, s18, 65536\nv_add_u32 v1, s18, v20\nv_add_u32 v2, s18, v21")
    for fn in range(2):
        for hh in range(2): A("ds_read_b64_tr_b16 %s, v%d offset:%d" % (v(HF + 4 * fn + 2 * hh, 2), 1 + fn, 2048 * hh))
    SA, GA, Tm = PS, PS + 8, FA
    A("""v_and_b32 v3, 3, v0
    v_lshrrev_b32 v6, 2, v7
    v_cmp_eq_u32 s[40:41], 1, v3
    v_cmp_eq_u32 s[42:43], 2, v3
    v_cmp_eq_u32 s[44:45], 3, v3
    v_cmp_eq_u32 s[46:47], v6, v4
    s_waitcnt lgkmcnt(0)
    s_barrier""")
    A.stamp(9)
    for fn in range(2):
        g = GA + 4 * fn
        A("v_cndmask_b32 v%d, v%d, v%d, s[40:41]" % (g, g, g + 1))
        A("v_cndmask_b32 v%d, v%d, v%d, s[42:43]" % (g, g, g + 2))
        A("v_cndmask_b32 v%d, v%d, v%d, s[44:45]" % (g, g, g + 3))
        A("v_cndmask_b32 v%d, 0, v%d, s[46:47]" % (g, g))
        A("v_mov_b32 v%d, v%d" % (g + 1, g))
    for fn in range(2): A("v_permlane32_swap_b32 v%d, v%d" % (GA + 4 * fn, GA + 4 * fn + 1))
    for fn in range(2):
        g = GA + 4 * fn
        A("v_add_f32 v%d, v%d, v%d\nv_mov_b32 v%d, v%d" % (g, g, g + 1, g + 1, g))
    for fn in range(2): A("v_permlane16_swap_b32 v%d, v%d" % (GA + 4 * fn, GA + 4 * fn + 1))
    A("""s_lshr_b32 s24, s17, 2
    s_lshr_b32 s27, s24, 1
    s_add_u32 s27, s27, 1
    s_sub_u32 s18, 0, s27
    s_bitcmp1_b32 s24, 0
    s_cselect_b32 s27, s18, s27
    s_add_u32 s27, s27, s29
    s_lshl_b32 s33, s17, 10
    s_add_u32 s33, s33, %d""" % H1)
    for fn in range(2):
        g = GA + 4 * fn; sa = SA + 4 * fn
        A("v_add_f32 v%d, v%d, v%d" % (g, g, g + 1))
        rowstats(A, sa, g, 512, g + 1, sa + 2, sa + 3)
        A("v_sub_f32 v%d, v%d, v%d" % (sa, sa, sa + 2))
        A("v_mul_f32 v%d, v%d, v%d" % (g, g, sa + 3))
        A("v_mul_f32 v%d, v%d, v%d" % (sa, sa, sa + 3))
        A("v_mul_f32 v%d, v%d, v%d" % (g, g, sa + 3))
        bf16r(A, sa, sa); bf16r(A, g, g)
        A("v_add_f32 v%d, %s, v%d" % (g, f32(1e-5), g))
        A("v_fma_f32 v%d, -v%d, v%d, -v%d" % (sa, sa, g + 1, sa + 2))
        bf16r(A, g, g)
        A("v_sqrt_f32 v%d, v%d" % (g, g))
        bf16r(A, g, g)
        A("v_rcp_f32 v%d, v%d" % (g + 1, g))
        A("v_mul_f32 v%d, v%d, v%d" % (g + 1, g + 1, sa + 3))
        gelu_consts(A, g + 1, g + 2, g)
    for fn in range(2):
        g = GA + 4 * fn; sa = SA + 4 * fn
        o = Tm + 8 + 4 * fn
        gelu8(A, ACC + 4 * fn, ACC + 8 + 4 * fn, CS, sa, g + 2, g, Tm, o)
        A("""v_add_u32 v1, s27, v7
        v_add_u32 v1, %d, v1
        v_cmp_gt_u32 vcc, 2048, v1
        v_and_b32 v1, 2047, v1
        v_lshrrev_b32 v2, 4, v1
        v_and_b32 v1, 15, v1
        v_lshlrev_b32 v2, 14, v2
        v_lshl_add_u32 v2, v1, 4, v2
        v_lshl_add_u32 v2, v4, 8, v2""" % (16 * fn))
        for i in range(4): A("v_cndmask_b32 v%d, 0, v%d, vcc" % (o + i, o + i))
        A("buffer_store_dwordx4 %s, v2, s[12:15], s33 offen%s" % (v(o, 4), opt.get("sh1", " sc1")))
    for fn in range(2):
        mu = SA + 4 * fn + 2
        A("v_mul_f32 v%d, -v%d, v%d" % (mu, mu, mu + 1))
        for i in range(4):
            h = HF + 4 * fn + i; t = RES + ((i >> 1) * 2 + fn) * 4 + 2 * (i & 1)
            A("v_lshlrev_b32 v%d, 16, v%d\nv_and_b32 v%d, 0xffff0000, v%d" % (t, h, t + 1, h))
            A("v_pk_fma_f32 %s, %s, %s, %s op_sel:[0,1,0] op_sel_hi:[1,1,0]" % (v(t, 2), v(t, 2), v(mu, 2), v(mu, 2)))
    setflag(A, 3, "s23")
    A.stamp(10)
    ks_setup(A, 2)
    def pre2():
        A("""v_lshrrev_b32 v1, 2, v0
        v_lshlrev_b32 v1, 4, v1
        s_bitcmp1_b32 s5, 0
        s_cselect_b32 s18, 32, -16
        v_mov_b32 v2, s18
        v_cmp_lt_u32 vcc, 7, v0
        v_cndmask_b32 v1, v1, v2, vcc
        v_and_b32 v2, 3, v0
        s_lshl_b32 s18, s19, 5
        s_lshl_b32 s24, s5, 2
        s_add_u32 s18, s18, s24
        v_add3_u32 v1, v1, v2, s18
        v_and_b32 v1, 1023, v1
        s_and_b32 s18, s5, 1
        s_mul_i32 s18, s18, 3
        s_and_b32 s24, s19, 3
        s_mov_b32 s45, 0
        s_cmp_eq_u32 s18, s24
        s_cselect_b32 s44, 0xf00, 0""")
        cpoll(A, 3, "0xfff", "s[44:45]")
        A.stamp(2)
    gemm_dir(A, 2, hA, pre2)
    A("s_barrier")
    A.stamp(3)
    A("s_add_u32 s24, s16, %d\ns_add_u32 s27, s16, %d" % (X1, X1 + 16384))
    for fn in range(2):
        src = [ACC + 4 * fn, ACC + 4 * fn + 2, ACC + 8 + 4 * fn, ACC + 8 + 4 * fn + 2]
        for i in range(4): A("v_cvt_pk_bf16_f32 v%d, v%d, v%d" % (Tm + 16 + 4 * fn + i, src[i], src[i] + 1))
        A("buffer_store_dwordx4 %s, v5, s[12:15], %s offen%s" % (v(Tm + 16 + 4 * fn, 4), "s24" if fn == 0 else "s27", opt.get("sx1", " sc1")))
        sm = Tm + 8 + 4 * fn
        A("v_pk_add_f32 %s, %s, %s" % (v(sm, 2), v(src[0], 2), v(src[1], 2)))
        A("v_pk_mul_f32 %s, %s, %s" % (v(sm + 2, 2), v(src[0], 2), v(src[0], 2)))
        A("v_pk_add_f32 %s, %s, %s" % (v(sm, 2), v(sm, 2), v(src[2], 2)))
        A("v_pk_fma_f32 %s, %s, %s, %s" % (v(sm + 2, 2), v(src[1], 2), v(src[1], 2), v(sm + 2, 2)))
        A("v_pk_add_f32 %s, %s, %s" % (v(sm, 2), v(sm, 2), v(src[3], 2)))
        A("v_pk_fma_f32 %s, %s, %s, %s" % (v(sm + 2, 2), v(src[2], 2), v(src[2], 2), v(sm + 2, 2)))
        A("v_add_f32 v%d, v%d, v%d" % (sm, sm, sm + 1))
        A("v_pk_fma_f32 %s, %s, %s, %s" % (v(sm + 2, 2), v(src[3], 2), v(src[3], 2), v(sm + 2, 2)))
        A("v_add_f32 v%d, v%d, v%d" % (sm + 2, sm + 2, sm + 3))
    s0, s1 = Tm + 8, Tm + 12
    A("v_permlane32_swap_b32 v%d, v%d\nv_permlane32_swap_b32 v%d, v%d" % (s0, s0 + 2, s1, s1 + 2))
    A("v_add_f32 v%d, v%d, v%d\nv_add_f32 v%d, v%d, v%d" % (s0, s0, s0 + 2, s1, s1, s1 + 2))
    A("v_permlane16_swap_b32 v%d, v%d" % (s0, s1))
    A("""v_add_f32 v%d, v%d, v%d
    v_and_b32 v1, 31, v0
    v_lshlrev_b32 v1, 7, v1
    v_lshrrev_b32 v2, 5, v0
    v_lshl_add_u32 v1, v2, 2, v1
    s_lshl_b32 s24, s29, 7
    s_lshl_b32 s27, s17, 3
    s_add_u32 s24, s24, s27
    s_add_u32 s24, s24, %d
    buffer_store_dword v%d, v1, s[12:15], s24 offen%s""" % (s0, s0, s1, P3, s0, opt.get("sp3", " sc1")))
    for fn in range(2):
        for i in range(4):
            h = HF + 4 * fn + i; o = ((i >> 1) * 2 + fn) * 4 + 2 * (i & 1); t = RES + o
            A("v_lshlrev_b32 v%d, 16, v%d\nv_and_b32 v%d, 0xffff0000, v%d" % (t, h, t + 1, h))
            A("v_pk_add_f32 %s, %s, %s" % (v(t, 2), v(t, 2), v(ACC + o, 2)))
    setflag(A, 4, "s23")
    A.stamp(11)
    A("s_cmp_lt_u32 s4, 28\ns_cbranch_scc1 L_c_g3")
    A("s_waitcnt vmcnt(0)\ns_barrier")
    if opt.get("idle4"):
        srd(A, 8, 54, 0x1c0000)
        A("""s_and_b32 s18, s4, 1
        s_lshl_b32 s18, s18, 2
        s_add_u32 s18, s18, s5
        s_lshl_b32 s18, s18, 13
        v_lshlrev_b32 v1, 7, v0
        v_add_u32 v1, s18, v1""")
        L = opt["idle4"]
        for k in range(len(L) // 2):
            A("s_bitcmp1_b32 s4, 1\ns_cselect_b32 s18, %d, %d\ns_lshl_b32 s18, s18, 16" % (L[2 * k + 1], L[2 * k]))
            A("buffer_load_dword v31, v1, s[8:11], s18 offen")
    A("s_branch L_c_g4")
    A.label("L_c_g3")
    A("""s_cmp_ge_u32 s4, 14
    s_cselect_b32 s32, 1, 0
    s_cselect_b32 s33, 14, 0
    s_sub_u32 s33, s4, s33
    s_lshl_b32 s18, s3, 1
    s_add_u32 s32, s32, s18
    s_lshl_b32 s32, s32, 2
    s_add_u32 s32, s32, s5
    v_lshlrev_b32 v3, 7, v7
    v_lshl_add_u32 v3, v4, 5, v3
    s_lshl_b32 s35, s32, 12
    s_add_u32 s35, s35, %d
    s_lshl_b32 s18, s22, 12
    s_lshl_b32 s24, s21, 1""" % P3)
    tr_bases(A, 20, 2, "s24", "s18")
    tr_bases(A, 8, 4, None)
    A("s_lshl_b32 s18, s5, 11\nv_add_u32 v6, s18, v5\ns_barrier")
    colsum(A, 3, hA)
    A("ds_write_b128 v6, %s offset:%d\nds_write_b128 v6, %s offset:%d" % (v(CS, 4), 3 * 8192, v(CS + 4, 4), 3 * 8192 + 1024))
    A.stamp(12)
    def pre3():
        A("""s_lshl_b32 s24, s32, 4
        v_add_u32 v1, s24, v0
        s_lshl_b32 s40, s32, 15
        s_add_u32 s40, s40, %d
        s_add_u32 s41, s40, 16384""" % X1)
        cpoll(A, 4, "0xffff")
        A.stamp(4)
    gemm_dir(A, 3, hA, pre3)
    A("s_waitcnt lgkmcnt(0)\ns_barrier")
    A.stamp(13)
    A("""s_mul_i32 s24, s32, %d
    s_lshl_b32 s27, s33, 12
    s_add_u32 s24, s24, s27
    s_add_u32 s24, s24, %d""" % (64 * 1792, H3))
    F = 2; PQ = HF; T3 = FA + 32
    for fn in range(F):
        p = PQ + 8 * fn
        A("v_pk_add_f32 %s, %s, %s" % (v(p, 2), v(p, 2), v(p + 2, 2)))
        A("v_pk_add_f32 %s, %s, %s" % (v(p + 4, 2), v(p + 4, 2), v(p + 6, 2)))
        A("v_pk_add_f32 %s, %s, %s" % (v(p, 2), v(p, 2), v(p + 4, 2)))
        A("v_mov_b32 v%d, v%d\nv_mov_b32 v%d, v%d" % (p + 2, p, p + 3, p + 1))
    for fn in range(F):
        p = PQ + 8 * fn
        A("v_permlane32_swap_b32 v%d, v%d\nv_permlane32_swap_b32 v%d, v%d" % (p, p + 2, p + 1, p + 3))
    for fn in range(F):
        p = PQ + 8 * fn
        A("v_pk_add_f32 %s, %s, %s" % (v(p, 2), v(p, 2), v(p + 2, 2)))
        A("v_mov_b32 v%d, v%d\nv_mov_b32 v%d, v%d" % (p + 2, p, p + 3, p + 1))
    for fn in range(F):
        p = PQ + 8 * fn
        A("v_permlane16_swap_b32 v%d, v%d\nv_permlane16_swap_b32 v%d, v%d" % (p, p + 2, p + 1, p + 3))
    for fn in range(F):
        p = PQ + 8 * fn
        A("v_pk_add_f32 %s, %s, %s" % (v(p, 2), v(p, 2), v(p + 2, 2)))
        rowstats(A, p, p + 1, 512, p + 2, p + 4, p + 3)
        A("v_mul_f32 v%d, -1.0, v%d" % (p + 4, p + 4))
        gelu_consts(A, p + 3, p + 6, p)
    for fn in range(F):
        p = PQ + 8 * fn
        for pr in range(4):
            o = T3 + 8 + 4 * (pr & 1)
            gelu8(A, ACC + ((2 * pr) * 2 + fn) * 4, ACC + ((2 * pr + 1) * 2 + fn) * 4, FA + 8 * pr, p + 4, p + 6, p, T3, o)
            A("buffer_store_dwordx4 %s, v5, s[12:15], s24 offen offset:%d%s" % (v(o, 4), 1024 * pr, opt.get("sh3", " sc1")))
        if fn < F - 1: A("s_add_u32 s24, s24, %d" % (32 * 1792))
    A("""s_lshl_b32 s18, s32, 4
    s_add_u32 s18, s18, s33
    s_lshl_b32 s18, s18, 2""")
    setflag(A, 5, "s18")
    A.label("L_c_g4")
    A.stamp(14)
    ks_setup(A, 4)
    A("s_barrier")
    def pre4():
        A("""s_lshl_b32 s18, s19, 5
        s_mul_i32 s24, s5, 7
        s_lshr_b32 s24, s24, 1
        s_add_u32 s18, s18, s24
        v_lshrrev_b32 v1, 2, v0
        v_and_b32 v2, 3, v0
        v_lshl_add_u32 v1, v1, 4, v2
        v_add_u32 v1, s18, v1""")
        cpoll(A, 5, "0xff")
        A.stamp(5)
    gemm_dir(A, 4, hA, pre4)
    A.stamp(6)
    srd(A, 8, 50, 0x200000)
    A("""v_lshlrev_b32 v1, 10, v7
    v_and_b32 v2, 1, v4
    v_lshl_add_u32 v1, v2, 5, v1
    v_lshrrev_b32 v2, 1, v4
    v_lshl_add_u32 v1, v2, 4, v1
    s_lshl_b32 s24, s29, 10
    s_lshl_b32 s27, s17, 6
    s_add_u32 s24, s24, s27
    s_add_u32 s27, s24, 16384""")
    for fn in range(2):
        src = [ACC + 4 * fn, ACC + 4 * fn + 2, ACC + 8 + 4 * fn, ACC + 8 + 4 * fn + 2]
        o = Tm + 4 * fn
        for i in range(4): A("v_cvt_pk_bf16_f32 v%d, v%d, v%d" % (o + i, src[i], src[i] + 1))
        A("v_permlane16_swap_b32 v%d, v%d\nv_permlane16_swap_b32 v%d, v%d" % (o, o + 2, o + 1, o + 3))
        A("buffer_store_dwordx4 %s, v1, s[8:11], %s offen" % (v(o, 4), "s24" if fn == 0 else "s27"))
    A.pend(0)

def _S(g, rng, p, at): return {(g, s): (p, at) for s in rng}
DEF = dict(at={(1, s): "B1" for s in range(8)}, bt=[1], idle4=W4ORD[20:],
           stg={**_S(4, W4ORD[20:], "A", "E3"), **_S(4, W4ORD[11:16], "B", "M3"), **_S(3, range(12, 16), "B", "G2")},
           touch={"B1": [(2, 0), (3, 0)], (1, 2): [(3, 1), (3, 2), (3, 3)], "G2": [(4, W4ORD[0:8]), (4, W4ORD[8:16])], "M3": [(4, W4ORD[16:20])]})
def gen_fused(A, opt={}):
    opt = dict(DEF, **opt)
    hA, hB, J = schedule(opt)
    GS[:] = opt.get("gs", (0, 1))
    A.l.append(".p2align 8"); A.label(NAME + "_kernel")
    A.pstart()
    A("""s_cmp_ge_u32 s2, 256
    s_cbranch_scc1 L_end
    v_lshrrev_b32 v1, 6, v0
    v_and_b32 v0, 63, v0
    v_readfirstlane_b32 s5, v1
    s_load_dwordx2 s[52:53], s[0:1], 112
    s_and_b32 s3, s2, 7
    s_lshr_b32 s4, s2, 3
    s_cmp_ge_u32 s5, 4
    s_cbranch_scc1 L_loader
    s_load_dwordx8 s[36:43], s[0:1], 0
    s_load_dwordx4 s[44:47], s[0:1], 32
    s_load_dwordx2 s[48:49], s[0:1], 48
    s_load_dwordx2 s[50:51], s[0:1], 96
    s_load_dwordx2 s[54:55], s[0:1], 88
    v_lshrrev_b32 v1, 2, v0
    v_mul_u32_u24 v1, %d, v1
    v_and_b32 v2, 3, v0
    v_lshl_add_u32 v1, v2, 2, v1
    v_add_u32 v1, 0x10000, v1
    v_mov_b32 v2, 0
    s_mov_b64 exec, 0xfff
    ds_write_b32 v1, v2 offset:%d
    s_mov_b64 exec, -1""" % (RP, SYNCW - 65536))
    gen_compute(A, hA, hB, opt)
    A.label("L_end")
    A("s_endpgm")
    A.label("L_loader")
    A("""s_load_dwordx2 s[36:37], s[0:1], 0
    s_load_dwordx8 s[40:47], s[0:1], 64
    s_load_dwordx2 s[50:51], s[0:1], 104""")
    gen_loader(A, hA, hB, J, opt)
    A.label("L_codeend")
    return (NAME + "_kernel", 256, 512, 163840, 256, 0)
```

```python
import sys
sys.path.insert(0, "work")
from hx import *
import gen, g_f4
from g_f4 import *
def buildf(path, prof=False, opt={}):
    gen.build([lambda A: gen_fused(A, opt)], path, prof)
    t = open(path).read().replace("; @launch kernel=%s_kernel " % NAME, "; @launch ")
    t = t.replace(".text\n", ".text\n.globl %s_kernel\n.type %s_kernel,@function\n" % (NAME, NAME), 1)
    open(path, "w").write(t)
    return path
def fo2(a, C):
    a = a.reshape(128, C // 32, 4, 16, 2, 4)
    return a.transpose(0, 3, 1, 4, 2, 5).reshape(2048, C)
def cmp(n, a, b):
    e = a - b
    print("%s: err max %.4g rms %.4g ref rms %.4g rel %.4g" % (n, np.abs(e).max(), np.sqrt((e ** 2).mean()), np.sqrt((b ** 2).mean()), np.sqrt((e ** 2).mean() / (b ** 2).mean())))
def check(r, z, full=False):
    R = lambda n, C=512: bf16_to_f32(z["t_" + n].reshape(2048, C))
    W = lambda off, C=512: bf16_to_f32(fo2(r.get_ws(off, np.uint16, (2048 * C,)), C))
    cmp("out", r.get_out(), bf16_to_f32(z["ref"].reshape(2048, 512)))
    if not full: return
    cmp("h", bf16_to_f32(r.get_ws(HT, np.uint16, (512, 2048))).T, R("h"))
    h1 = R("h1"); hs = np.zeros_like(h1)
    hs[1:, :128] = h1[:-1, :128]; hs[:-1, 128:256] = h1[1:, 128:256]; hs[2:, 256:384] = h1[:-2, 256:384]; hs[:-2, 384:] = h1[2:, 384:]
    cmp("h1s", W(H1), hs); cmp("x1", W(X1), R("x1")); cmp("h3", W(H3, 1792), R("h3", 1792))
    cmp("out", r.get_out(), bf16_to_f32(z["ref"].reshape(2048, 512)))
DET = []
def prof(r, flush=True):
    r.reload()
    r.reset(ws_bytes=WEND); r.sync()
    if flush: r.do_flush()
    r.launch(); r.sync()
    a = r.get_ws(PROF, np.uint32, (256, 8, 16)).astype(np.int64)
    t0 = a[:, :, 0].min()
    if DET:
        for s_ in DET:
            b = a[:, :4, s_].max(axis=1).reshape(32, 8)
            print("det", s_, " ".join("%.1f" % ((x - t0) / 100) for x in np.median(b, axis=1)))
    for nm, ws in (("C", [0, 1, 2, 3]), ("Bld", [4, 5]), ("Ald", [6, 7])):
        b = a[:, ws].reshape(-1, 16)
        out = []
        for s_ in range(16):
            c = b[:, s_]; c = c[c != 0]
            if len(c): out.append("%d:[%.1f %.1f]" % (s_, (np.median(c) - t0) / 100, (c.max() - t0) / 100))
        print(nm, " ".join(out))
if __name__ == "__main__":
    if len(sys.argv) > 1 and sys.argv[1].endswith(".s"):
        buildf(sys.argv[1]); sys.exit(0)
    z, inputs = load_ref(0)
    opts = eval(sys.argv[1]) if len(sys.argv) > 1 else [{}]
    for opt in opts:
        DET[:] = opt.get('det', [])
        print("=====", opt)
        r = Runner(buildf("f.s", False, opt), inputs)
        r.reset(); r.launch(); r.sync()
        check(r, z, opt.get('full', False))
        if opt.get("rep"):
            gold = None; nbad = 0
            for it in range(opt["rep"]):
                r.reset(ws_bytes=WEND); r.sync()
                if it & 1: r.do_flush()
                r.launch(extra=opt.get("extra", 0), numbering=opt.get("num", 0)); r.sync()
                cur = dict(h=r.get_ws(HT, np.uint16, (512, 2048)).T.copy(), h1=fo2(r.get_ws(H1, np.uint16, (2048 * 512,)), 512), x1=fo2(r.get_ws(X1, np.uint16, (2048 * 512,)), 512),
                           h3=fo2(r.get_ws(H3, np.uint16, (2048 * 1792,)), 1792), out=r.get_out().copy())
                if gold is None: gold = cur; continue
                for k in cur:
                    d = np.argwhere(cur[k] != gold[k])
                    if len(d):
                        nbad += 1
                        print(it, k, len(d), "rows", sorted(set(d[:, 0]))[:12], "cols", d[:, 1].min(), d[:, 1].max())
            print("rep done bad", nbad)
            check(r, z)
        print("time %.1f %.1f" % r.time(30), "reload %.1f %.1f" % r.time(30, reload=True))
        r.k.unload(); del r
        r = Runner(buildf("fp.s", True, opt), inputs)
        for it in range(opt.get('np', 1)): prof(r)
        r.k.unload(); del r
```

```python
import g_base
from g_base import *
from g_k1 import rowstats, gen_kgen_tables, ZSH, ZRB, RP
from g_k2 import conv_main
from g_gemm import gelu8, gelu_consts, VM
HT, H1, X1, H3, P3, FLG, PROF, UX, WEND = 0, 0x200000, 0x400000, 0x600000, 0xD00000, 0xD60000, 0xD80000, 0xE00000, 0x1200000
g_base.WS_PROF = PROF
F1, F2, BL, BG = FLG, FLG + 0x1000, FLG + 0x2000, FLG + 0x3000
FL = {3: FLG + 0x4000, 4: FLG + 0x5000, 5: FLG + 0x6000}
FG = {3: FLG + 0x8000, 4: FLG + 0xC000, 5: FLG + 0x10000}
R0 = 65536; TB = R0 + 17408; RED = 98304
SYNCW = TB + 20 * RP + 512; TOKW = TB + 21 * RP + 512; LSW = TB + 22 * RP + 512; CNTW = LSW + 8
TP = 2080
SPIN = 100000
TOK = "s93"
NS = {1: 8, 2: 8, 3: 16, 4: 28}

GC = [0.3986358642578125, -0.06593310832977295, 0.00945422612130642, -0.0009619004558771849, 6.383143045241013e-05, -2.4297380605275976e-06, 3.972028039811448e-08]
def gelu_sconst(A):
    for i, c in enumerate([0.5] + GC): A("s_mov_b32 s%d, %s" % (80 + i, f32(c)))
def gelu8p(A, acc0, acc1, cs, nmu, rho, T, out):
    src = [acc0, acc0 + 2, acc1, acc1 + 2]
    def bc(r): return v(r & ~1, 2), r & 1
    (nm, nh), (rh, rs) = bc(nmu), bc(rho)
    for i in range(4): A("v_pk_fma_f32 %s, %s, %s, %s op_sel:[0,%d,0] op_sel_hi:[1,%d,1]" % (v(src[i], 2), v(cs + 2 * i, 2), nm, v(src[i], 2), nh, nh))
    for i in range(4): A("v_pk_mul_f32 %s, %s, %s op_sel:[0,%d] op_sel_hi:[1,%d]" % (v(src[i], 2), v(src[i], 2), rh, rs, rs))
    for i in range(4): A("v_pk_mul_f32 %s, %s, %s" % (v(T + 2 * i, 2), v(src[i], 2), v(src[i], 2)))
    for i in range(4): A("v_pk_fma_f32 %s, %s, s[86:87], s[86:87] op_sel:[0,1,0] op_sel_hi:[1,1,0]" % (v(T + 8 + 2 * i, 2), v(T + 2 * i, 2)))
    for k in (4, 3, 2, 1, 0):
        r = 81 + k
        for i in range(4): A("v_pk_fma_f32 %s, %s, %s, %s op_sel:[0,0,%d] op_sel_hi:[1,1,%d]" % (v(T + 8 + 2 * i, 2), v(T + 8 + 2 * i, 2), v(T + 2 * i, 2), s(r & ~1, 2), r & 1, r & 1))
    for i in range(4): A("v_pk_fma_f32 %s, %s, %s, s[80:81] op_sel_hi:[1,1,0] clamp" % (v(T + 8 + 2 * i, 2), v(T + 8 + 2 * i, 2), v(src[i], 2)))
    for i in range(4): A("v_pk_mul_f32 %s, %s, %s" % (v(T + 2 * i, 2), v(T + 8 + 2 * i, 2), v(src[i], 2)))
    for i in range(4): A("v_cvt_pk_bf16_f32 v%d, v%d, v%d" % (out + i, T + 2 * i, T + 2 * i + 1))

W4ORD = [0, 7, 1, 8, 2, 9, 10, 4, 11, 14, 15, 21, 22, 3, 16, 23, 17, 24, 18, 25, 5, 12, 19, 26, 6, 13, 20, 27]
def schedule(opt):
    hA = {g: [None] * NS[g] for g in NS}; hB = {1: [8 + s for s in range(8)]}
    J = []
    def job(g, S, h, at, gate):
        hA[g][S] = h
        at = opt.get("at", {}).get((g, S), at)
        st = opt.get("stg", {}).get((g, S))
        if st: J.append(dict(g=g, S=S, h=h, pair=st[0], ld=st[1], wr=at, gate=gate))
        else: J.append(dict(g=g, S=S, h=h, pair="A", ld=at, wr=None, gate=gate))
    for s in range(8): job(1, s, s, "B0", "B2")
    for s in range(4): job(2, s, 16 + s, "B1", "E1")
    for s in range(4): job(2, 4 + s, s, (1, 2 + s), "E1")
    job(3, 0, 4, (1, 6), "X3"); job(3, 1, 5, (1, 7), "X3")
    WL = opt.get("w3late", 12)
    for s in range(2, WL): job(3, s, 4 + s, opt.get("w3at", "E1"), "X3")
    for s in range(WL, 16): job(3, s, 4 + s, "X3", "M3")
    for n, S in enumerate(W4ORD): job(4, S, 5 * (S // 7) + (S % 7) % 5, "M3" if n < 11 else "E3" if n < 20 else "Q1", "Q0" if n < 20 else "Q2")
    return hA, hB, J

def poll(A, vaddr, lanes, R=100):
    L = A.new("L_poll"); D = A.new("L_polld")
    A("s_mov_b32 exec_lo, %s\ns_mov_b32 exec_hi, 0\ns_mov_b32 s30, 0" % lanes)
    A.label(L)
    A("""buffer_load_dword v%d, v%d, s[12:15], 0 offen sc1
    s_add_u32 s30, s30, 1
    s_waitcnt vmcnt(0)
    v_cmp_ne_u32 vcc, %s, v%d
    s_cbranch_vccz %s
    s_cmp_lt_u32 s30, %d
    s_cbranch_scc1 %s""" % (R, vaddr, TOK, R, D, SPIN, L))
    A.label(D)
    A("s_mov_b64 exec, -1")

def pairsync(A, k, vo, vp, t):
    L = A.new("L_ps"); D = A.new("L_psd")
    A("v_mov_b32 v%d, %d\ns_waitcnt lgkmcnt(0)\nds_write_b32 v%d, v%d\ns_mov_b32 s30, 0" % (t, k, vo, t))
    A.label(L)
    A("""ds_read_b32 v%d, v%d
    s_add_u32 s30, s30, 1
    s_waitcnt lgkmcnt(0)
    v_readfirstlane_b32 s31, v%d
    s_cmp_ge_u32 s31, %d
    s_cbranch_scc1 %s
    s_cmp_lt_u32 s30, 0x%x
    s_cbranch_scc1 %s""" % (t, vp, t, k, D, SPIN * 16, L))
    A.label(D)

def setflag(A, k, idx4):
    A("""s_lshl_b32 s31, %s, 2
    v_mov_b32 v1, %d
    v_mov_b32 v3, %d
    v_mov_b32 v2, %s
    s_mov_b64 exec, 1
    s_waitcnt vmcnt(0)
    buffer_store_dword v2, v1, s[12:15], %s offen
    buffer_store_dword v2, v3, s[12:15], s31 offen sc1
    s_mov_b64 exec, -1""" % (idx4, FL[k], FG[k], TOK, idx4))

def allsync(A, base, k):
    F = A.new("L_fol"); D = A.new("L_asd"); L = A.new("L_pa"); L2 = A.new("L_pb"); X = A.new("L_pax")
    A("""s_lshl_b32 s18, s3, 8
    s_add_u32 s18, s18, %d
    s_mov_b32 s30, 0
    s_add_u32 s31, s4, s7
    s_cmp_lg_u32 s31, 0
    s_cbranch_scc1 %s
    v_lshlrev_b32 v7, 4, v0
    v_add_u32 v7, %d, v7""" % (k * 0x800, F, base))
    A.label(L)
    for i in range(4): A("buffer_load_dword v%d, v7, s[12:15], 0 offen offset:%d sc1" % (24 + i, 1024 * i))
    A("s_add_u32 s30, s30, 1\ns_waitcnt vmcnt(0)")
    for i in range(4): A("v_xor_b32 v%d, %s, v%d" % (24 + i, TOK, 24 + i))
    A("""v_or3_b32 v24, v24, v26, v27
    v_or_b32 v24, v24, v25
    v_cmp_lt_u32 vcc, 1, v24
    s_cbranch_vccz %s
    s_cmp_lt_u32 s30, %d
    s_cbranch_scc1 %s""" % (X, SPIN, L))
    A.label(X)
    A("""v_cmp_eq_u32 vcc, 1, v24
    s_cmp_lg_u64 vcc, 0
    s_cselect_b32 s92, 1, 0
    s_or_b32 s92, s92, %s
    v_mov_b32 v24, s92
    v_lshlrev_b32 v7, 2, v0
    v_add_u32 v25, %d, v7
    v_add_u32 v7, %d, v7
    s_mov_b32 exec_hi, 0
    buffer_store_dword v24, v25, s[12:15], s18 offen
    s_mov_b64 exec, 1
    buffer_store_dword v24, v7, s[12:15], s18 offen sc1
    s_branch %s""" % (TOK, BL, BG, D))
    A.label(F)
    A("""s_lshl_b32 s31, s91, 12
    s_add_u32 s31, s31, %d
    v_mov_b32 v7, s31
    s_mov_b64 exec, 1""" % BL)
    A.label(L2)
    A("""buffer_load_dword v24, v7, s[12:15], s18 offen sc1
    s_add_u32 s30, s30, 1
    s_waitcnt vmcnt(0)
    v_readfirstlane_b32 s92, v24
    s_xor_b32 s31, s92, %s
    s_cmp_le_u32 s31, 1
    s_cbranch_scc1 %s
    s_cmp_lt_u32 s30, %d
    s_cbranch_scc1 %s""" % (TOK, D, SPIN, L2))
    A.label(D)
    A("s_mov_b64 exec, -1")

def gen_loader(A, hA, hB, J, opt):
    UXC = opt.get("uxc", 0)
    if opt.get("prio", 1): A("s_setprio 3")
    A("""s_sub_u32 s6, s5, 4
    s_and_b32 s7, s6, 1
    s_lshl_b32 s26, s7, 12
    s_lshr_b32 s19, s4, 3
    s_lshl_b32 s18, s3, 2
    s_add_u32 s19, s19, s18
    s_and_b32 s20, s4, 7
    s_cmp_ge_u32 s4, 14
    s_cselect_b32 s21, 1, 0
    s_cselect_b32 s22, 14, 0
    s_sub_u32 s22, s4, s22
    s_lshl_b32 s18, s3, 1
    s_add_u32 s21, s21, s18
    s_cmp_ge_u32 s6, 2
    s_cbranch_scc1 L_aload
    v_lshlrev_b32 v3, 4, v0
    s_lshl_b32 s16, s2, 13
    s_add_u32 s16, s16, s26
    s_memrealtime s[60:61]
    s_getreg_b32 s59, hwreg(HW_REG_XCC_ID, 0, 4)
    s_lshl_b32 s17, s3, 2
    s_add_u32 s17, s17, 4
    s_add_u32 s59, s59, 1
    v_mul_u32_u24 v6, s17, v0
    v_lshlrev_b32 v5, 2, v0
    s_waitcnt lgkmcnt(0)""")
    srd(A, 8, 36, 0x200000); srd(A, 32, 50, 256)
    A("""s_or_b32 s60, s60, 2
    s_and_b32 s60, s60, -2
    s_add_u32 s31, s4, s7
    s_cmp_lg_u32 s31, 0
    s_cbranch_scc1 L_notok
    v_mov_b32 v104, s59
    v_writelane_b32 v104, s60, 0
    s_cmp_eq_u32 s2, 0
    s_cselect_b32 exec_lo, 3, 2
    s_mov_b32 exec_hi, 0
    buffer_store_dword v104, v6, s[32:35], 0 offen sc1
    s_mov_b64 exec, -1""")
    A.label("L_notok")
    for r in range(4): A("buffer_load_dwordx4 %s, v3, s[8:11], s16 offen offset:%d" % (v(16 + 4 * r, 4), 1024 * r))
    srd(A, 12, 52, WEND)
    A("""s_mov_b32 s24, 0x3f803f80
    s_mov_b32 s90, %s
    s_mul_i32 s18, s7, %d
    s_add_u32 s18, s18, %d
    v_lshl_add_u32 v8, v0, 5, s18
    v_bfe_u32 v9, v0, 2, 2
    v_mul_u32_u24 v9, %d, v9
    v_and_b32 v10, 3, v0
    v_lshl_add_u32 v9, v10, 3, v9
    v_lshrrev_b32 v11, 4, v0
    v_lshl_add_u32 v9, v11, 5, v9
    s_lshl_b32 s18, s7, 10
    s_add_u32 s18, s18, %d
    v_add_u32 v9, s18, v9
    %s
    s_add_u32 s16, s16, s18
    s_add_u32 s16, s16, %d
    s_lshl_b32 s18, s7, 2
    s_add_u32 s18, s18, %d
    v_mov_b32 v12, s18
    v_xor_b32 v13, 4, v12
    s_barrier""" % (f32(1.0 / 512), 4 * TP, R0, TP, R0, "v_lshlrev_b32 v10, 4, v0\ns_lshl_b32 s16, s7, 13\ns_lshl_b32 s18, s2, 14" if UXC else
      "v_lshrrev_b32 v11, 2, v0\nv_lshlrev_b32 v11, 14, v11\nv_lshl_add_u32 v10, v10, 4, v11\ns_lshl_b32 s16, s7, 21\ns_lshl_b32 s18, s2, 6", UX, LSW))
    for k in range(8): A("v_mov_b32 v%d, 0" % (96 + k))
    A("s_waitcnt vmcnt(0)\nbuffer_load_dword v104, v5, s[32:35], 0 offen sc1")
    BT = opt.get("bt", ())
    for g in BT:
        if g == "r":
            A("s_bitcmp1_b32 s3, 0\ns_cselect_b32 s60, s42, s40\ns_cselect_b32 s61, s43, s41")
            srd(A, 8, 60, 0x80000)
        else: srd(A, 8, 38 + 2 * g, 0x80000)
        A("s_lshl_b32 s18, s4, 1\ns_add_u32 s18, s18, s7\ns_lshl_b32 s18, s18, 13\nv_lshlrev_b32 v7, 7, v0\nbuffer_load_dword v105, v7, s[8:11], s18 offen")
    A.stamp(1)
    for e in range(4):
        for r in range(4):
            x = 16 + 4 * r + e
            A("v_dot2_f32_bf16 v%d, v%d, s24, v%d" % (96 + r, x, 96 + r))
            A("v_dot2_f32_bf16 v%d, v%d, v%d, v%d" % (100 + r, x, x, 100 + r))
    for a in (96, 98, 100, 102): A("v_permlane32_swap_b32 v%d, v%d" % (a, a + 1))
    for a in (96, 98, 100, 102): A("v_add_f32 v%d, v%d, v%d" % (a, a, a + 1))
    A("v_permlane16_swap_b32 v96, v98\nv_permlane16_swap_b32 v100, v102\nv_add_f32 v96, v96, v98\nv_add_f32 v100, v100, v102")
    for sh in (8, 4, 2, 1):
        for a in (96, 100): A("v_add_f32_dpp v%d, v%d, v%d row_ror:%d row_mask:0xf bank_mask:0xf" % (a, a, a, sh))
    for r in range(4):
        for e in range(4):
            x = 16 + 4 * r + e; t = 32 + 8 * r + 2 * e
            A("v_lshlrev_b32 v%d, 16, v%d\nv_and_b32 v%d, 0xffff0000, v%d" % (t, x, t + 1, x))
            A("v_mov_b32 v%d, v%d" % (64 + 8 * r + 2 * e + 1, x))
    rowstats(A, 96, 100, 512, 97, 98, 99)
    A("v_mul_f32 v98, -v98, v99")
    for r in range(4):
        ln = 16 * [0, 2, 1, 3][r]
        A("v_readlane_b32 s%d, v98, %d\nv_readlane_b32 s%d, v99, %d" % (80 + 2 * r, ln, 81 + 2 * r, ln))
    for r in range(4):
        for e in range(4):
            t = 32 + 8 * r + 2 * e
            A("v_pk_fma_f32 %s, %s, %s, %s op_sel:[0,1,0] op_sel_hi:[1,1,0]" % (v(t, 2), v(t, 2), s(80 + 2 * r, 2), s(80 + 2 * r, 2)))
        for e in range(4):
            t = 32 + 8 * r + 2 * e
            A("v_cvt_pk_f16_f32 v%d, v%d, v%d" % (64 + 8 * r + 2 * e, t, t + 1))
        A("ds_write_b128 v8, %s offset:%d\nds_write_b128 v8, %s offset:%d" % (v(64 + 8 * r, 4), r * TP, v(68 + 8 * r, 4), r * TP + 16))
    pairsync(A, 1, 12, 13, 14)
    A.stamp(2)
    for j in range(8):
        A("ds_read_b64_tr_b16 %s, v9 offset:%d\nds_read_b64_tr_b16 %s, v9 offset:%d" % (v(16 + 4 * j, 2), 128 * j, v(18 + 4 * j, 2), 128 * j + 4 * TP))
    for j in range(8):
        A("s_waitcnt lgkmcnt(%d)" % (14 - 2 * j))
        A("buffer_store_dwordx4 %s, v10, s[12:15], s16 offen offset:%d sc1" % (v(16 + 4 * j, 4), 1024 * (j & 3) if UXC else 0))
        if UXC and j == 3: A("s_add_u32 s16, s16, 4096")
        if not UXC and j < 7: A("s_add_u32 s16, s16, 0x40000")
    A("""s_cmp_lg_u32 s7, 0
    s_cbranch_scc1 L_tokd
    s_mov_b32 s30, 0
    s_add_u32 s17, s3, 1
    s_waitcnt vmcnt(%d)""" % (8 + len(BT)))
    A.label("L_tok")
    A("""v_readlane_b32 %s, v104, 0
    v_readlane_b32 s91, v104, s17
    s_min_u32 s31, %s, s91
    s_cmp_lg_u32 s31, 0
    s_cbranch_scc1 L_tokx
    buffer_load_dword v104, v5, s[32:35], 0 offen sc1
    s_add_u32 s30, s30, 1
    s_waitcnt vmcnt(0)
    s_cmp_lt_u32 s30, %d
    s_cbranch_scc1 L_tok""" % (TOK, TOK, SPIN))
    A.label("L_tokx")
    A("""s_cmp_lg_u32 s91, s59
    s_cselect_b32 s91, 1, 0
    s_or_b32 s31, s91, %s
    v_mov_b32 v104, s31
    v_mov_b32 v7, %d
    ds_write_b32 v7, v104""" % (TOK, TOKW))
    A.label("L_tokd")
    A("s_waitcnt vmcnt(0)")
    pairsync(A, 2, 12, 13, 14)
    A("""s_cmp_lg_u32 s7, 0
    s_cbranch_scc1 L_nof1
    s_lshl_b32 s18, s2, 4
    v_mov_b32 v7, %d
    s_mov_b64 exec, 1
    buffer_store_dword v104, v7, s[12:15], s18 offen sc1
    s_mov_b64 exec, -1""" % F1)
    A.label("L_nof1")
    A("""v_mov_b32 v7, %d
    ds_read_b32 v104, v7
    v_mov_b32 v8, 0
    v_mov_b32 v9, 0
    s_mul_i32 s18, s7, 8704
    s_add_u32 s18, s18, %d
    v_lshl_add_u32 v7, v0, 3, s18
    ds_write_b64 v7, v[8:9]
    v_lshlrev_b32 v8, %d, v0
    s_lshl_b32 s16, s3, 5
    s_add_u32 s16, s16, s4
    s_lshl_b32 s16, s16, %d
    s_lshl_b32 s18, s7, %d
    s_add_u32 s16, s16, s18
    s_add_u32 s16, s16, %d
    s_add_u32 s17, s16, %d
    s_lshl_b32 s23, s7, 11
    s_waitcnt lgkmcnt(1)
    v_readfirstlane_b32 s31, v104
    s_and_b32 s91, s31, 1
    s_and_b32 %s, s31, -2""" % ((TOKW, R0) + ((14, 6, 21, UX, 0x100000 - 1024) if UXC else (6, 14, 13, UX, 3072)) + (TOK,)))
    A.stamp(3)
    for g in opt.get("bt2", ()):
        srd(A, 8, 38 + 2 * g, 0x80000)
        A("s_lshl_b32 s18, s4, 1\ns_add_u32 s18, s18, s7\ns_lshl_b32 s18, s18, 13\nv_lshlrev_b32 v7, 7, v0\nbuffer_load_dword v105, v7, s[8:11], s18 offen")
    allsync(A, F1, 0)
    A.stamp(4)
    for q in range(4):
        A("s_add_u32 m0, s23, %d" % (R0 + (q & 1) * 8704 + (512 if q < 2 else 4608)))
        A("buffer_load_dwordx4 v8, s[12:15], s16 offen lds\nbuffer_load_dwordx4 v8, s[12:15], s17 offen offset:1024 lds")
        if q < 3: A("s_add_u32 s16, s16, 16\ns_add_u32 s17, s17, 16")
    A("""s_lshl_b32 s31, s2, 1
    s_add_u32 s31, s31, s7
    s_cmp_lg_u32 s31, 0
    s_cbranch_scc1 L_nozd
    v_mov_b32 v9, 0
    s_mov_b64 exec, 0xffff
    buffer_store_dword v9, v5, s[32:35], 0 offen sc1
    s_mov_b64 exec, -1""")
    A.label("L_nozd")
    A("s_and_b32 s1, s92, 1\nv_mov_b32 v9, s1\nv_mov_b32 v7, %d\nds_write_b32 v7, v9" % (TOKW + 4))
    def trlane():
        A("""v_lshrrev_b32 v1, 3, v0
        v_and_b32 v2, 6, v1
        v_and_b32 v3, 7, v0
        v_xor_b32 v2, v2, v3
        v_lshlrev_b32 v2, 4, v2""")
    trlane()
    A("s_waitcnt vmcnt(0) lgkmcnt(0)")
    A.stamp(5)
    A("s_barrier\ns_setprio 0")
    def trvoff(pitch, r=8):
        A("v_mul_u32_u24 v%d, %d, v1\nv_add_u32 v%d, v%d, v2" % (r, pitch, r, r))
        for b in range(1, 4): A("v_add_u32 v%d, %d, v%d" % (r + b, b * (8 * pitch - 1024), r))
    wp = {1: 40, 2: 42, 3: 44, 4: 46}; wsz = {1: 0x80000, 2: 0x80000, 3: 0x1c0000, 4: 0x1c0000}
    tch = opt.get("touch", {}); TF = opt.get("tf", ("B1",))
    def wsetup():
        A("""s_lshl_b32 s54, s7, 15
        s_lshl_b32 s18, s20, 7
        s_add_u32 s54, s54, s18
        s_lshl_b32 s56, s7, 7
        s_lshl_b32 s18, s22, 8
        s_add_u32 s56, s56, s18
        v_lshl_add_u32 v28, v0, 4, s26
        v_add_u32 v29, 0x10000, v28
        v_add_u32 v30, 0x20000, v28""")
        trvoff(1024, 16); trvoff(3584, 20)
    def engine(P, bars, vm, last):
        cur = [None]; reg = {}; free = list(range(32, 240, 16)); dirty = [False]; reuse = set()
        mine = [j for j in J if j["pair"] == P]
        def setw(g):
            if cur[0] != g: srd(A, 8, wp[g], wsz[g]); cur[0] = g
        def load(j):
            g = j["g"]; setw(g)
            A("s_add_u32 s18, s%d, %d" % (56 if g == 3 else 54, j["S"] * (32 * 3584 if g == 3 else 65536)))
            if j["wr"] is None: A("s_add_u32 m0, s26, %d" % (j["h"] * 8192))
            else:
                reg[id(j)] = free.pop(0)
                if reg[id(j)] in reuse: A("s_waitcnt lgkmcnt(0)"); reuse.clear()
            for k in range(4):
                va = (20 if g == 3 else 16) + k
                if j["wr"] is None: A("buffer_load_dwordx4 v%d, s[8:11], s18 offen offset:%d lds" % (va, 1024 * k))
                else: A("buffer_load_dwordx4 %s, v%d, s[8:11], s18 offen offset:%d" % (v(reg[id(j)] + 4 * k, 4), va, 1024 * k))
            last[id(j)] = vm.add(4)
        def write(j):
            vm.wait(A, last[id(j)])
            for k in range(4):
                a_ = j["h"] * 8192 + 1024 * k
                A("ds_write_b128 v%d, %s offset:%d" % (28 + (a_ >> 16), v(reg[id(j)] + 4 * k, 4), a_ & 0xffff))
            dirty[0] = True; free.append(reg[id(j)]); reuse.add(reg[id(j)])
        def touch(gk):
            g, k = gk
            if g == "r3":
                setw(3)
                A("""s_add_u32 s60, s3, %d
                s_and_b32 s60, s60, 3
                s_mul_i32 s60, s60, 7
                s_lshr_b32 s27, s4, 2
                s_min_u32 s27, s27, 6
                s_add_u32 s60, s60, s27
                s_lshl_b32 s18, s4, 1
                s_and_b32 s18, s18, 6
                s_add_u32 s18, s18, s7
                s_lshl_b32 s60, s60, 3
                s_add_u32 s18, s18, s60
                s_lshl_b32 s18, s18, 13
                v_lshlrev_b32 v7, 7, v0
                buffer_load_dword v24, v7, s[8:11], s18 offen""" % k); vm.add(1)
                return
            if g == "r2":
                A("s_bitcmp1_b32 s3, 0\ns_cselect_b32 s60, s40, s42\ns_cselect_b32 s61, s41, s43")
                srd(A, 8, 60, 0x80000); cur[0] = None
                A("s_lshl_b32 s18, s4, 1\ns_add_u32 s18, s18, s7\ns_lshl_b32 s18, s18, 13\nv_lshlrev_b32 v7, 7, v0\nbuffer_load_dword v24, v7, s[8:11], s18 offen"); vm.add(1)
                return
            setw(g)
            if isinstance(k, (list, tuple)):
                k = list(k) + [k[-1]] * (8 - len(k))
                lo = sum(k[q] << (8 * q) for q in range(4)); hi = sum(k[4 + q] << (8 * q) for q in range(4))
                A("""s_mov_b32 s60, 0x%x
                s_mov_b32 s61, 0x%x
                s_lshl_b32 s18, s4, 1
                s_and_b32 s27, s18, 0x38
                s_lshr_b64 s[60:61], s[60:61], s27
                s_and_b32 s60, s60, 0xff
                s_and_b32 s18, s18, 6
                s_add_u32 s18, s18, s7
                s_lshl_b32 s60, s60, 3
                s_add_u32 s18, s18, s60
                s_lshl_b32 s18, s18, 13
                v_lshlrev_b32 v7, 7, v0
                buffer_load_dword v24, v7, s[8:11], s18 offen""" % (lo, hi)); vm.add(1)
                return
            n = wsz[g] // 128 // 64
            A("s_lshl_b32 s18, s4, 1\ns_add_u32 s18, s18, s7\ns_mul_i32 s18, s18, %d\ns_add_u32 s18, s18, %d\nv_lshlrev_b32 v7, 7, v0" % (n * 128, k * 8192))
            if n - 64 * k < 64: A("s_mov_b32 exec_hi, 0")
            A("buffer_load_dword v24, v7, s[8:11], s18 offen"); vm.add(1)
            if n - 64 * k < 64: A("s_mov_b64 exec, -1")
        def act(b, skip3=False):
            if P == "A" and b in TF and not skip3:
                for gk in tch.get(b, ()): touch(gk)
            for j in mine:
                if j["wr"] == b:
                    if skip3 and j["g"] == 3: free.append(reg[id(j)])
                    else: write(j)
            for j in mine:
                if j["ld"] == b:
                    if skip3 and j["g"] == 3:
                        if j["wr"] is not None: reg[id(j)] = free.pop(0)
                    else: load(j)
            if P == "A" and not skip3 and b not in TF:
                for gk in tch.get(b, ()): touch(gk)
        lastb = max(i for i, b in enumerate(bars) if i == 0 or b in last or any(b in (j["ld"], j["wr"], j["gate"]) for j in mine))
        if lastb >= bars.index("E2"): lastb = max(lastb, bars.index("Q0"))
        for i, b in enumerate(bars[:lastb + 1]):
            if b == "Q0":
                A.label("L_%s_g4" % P); A("s_waitcnt vmcnt(0) lgkmcnt(0)"); cur[0] = None
            else:
                w = [last[id(j)] for j in mine if j["gate"] == b and j["wr"] is None] + ([last[b]] if b in last else [])
                if w: vm.wait(A, max(w))
                if dirty[0] and any(j["gate"] == b for j in mine): A("s_waitcnt lgkmcnt(0)"); dirty[0] = False
            if b in ("~1", "~2", "~3"):
                if opt.get("sl" + b[1]): A("s_sleep %d" % opt["sl" + b[1]])
            elif i > 0:
                if b == "X3": A.stamp(8)
                A("s_barrier")
            if b == "E2":
                A("s_cmp_lt_u32 s4, 28\ns_cbranch_scc1 L_%s_g3\ns_barrier" % P)
                sv = (vm.n, dict(last), cur[0], list(free), set(reuse), dict(reg), dirty[0])
                for bb in ("E2", "X3", "M3", "E3"): act(bb, True)
                A("s_branch L_%s_g4" % P)
                vm.n, cur[0], free[:], dirty[0] = sv[0], sv[2], sv[3], sv[6]; last.clear(); last.update(sv[1]); reuse.clear(); reuse.update(sv[4]); reg.clear(); reg.update(sv[5])
                A.label("L_%s_g3" % P)
            if b == "B1": A("s_setprio 0")
            act(b)
            if b == "X3" and P == "B":
                tr_bases(A, 116, 4, None, "s26")
                for i_ in range(4): A("v_mov_b32 v%d, 0x3f803f80" % (112 + i_))
                def rd(t_):
                    for fm in range(4):
                        for hh in range(2):
                            a_ = hA[3][t_] * 8192 + 2048 * hh
                            A("ds_read_b64_tr_b16 %s, v%d offset:%d" % (v(32 + ((t_ & 1) * 4 + fm) * 4 + 2 * hh, 2), 116 + (a_ >> 16) * 4 + fm, a_ & 0xffff))
                rd(0)
                for t_ in range(16):
                    if t_ < 15: rd(t_ + 1)
                    for fm in range(4):
                        A("s_waitcnt lgkmcnt(%d)" % ((14 if t_ < 15 else 6) - 2 * fm))
                        A("v_mfma_f32_16x16x32_bf16 %s, %s, v[112:115], %s" % (v(96 + 4 * fm, 4), v(32 + ((t_ & 1) * 4 + fm) * 4, 4), "0" if t_ == 0 else v(96 + 4 * fm, 4)))
                A("s_nop 7\ns_nop 7")
                for fm in range(4): A("ds_write_b128 v28, %s offset:%d" % (v(96 + 4 * fm, 4), 3 * 8192 + 1024 * fm))
                A("s_waitcnt lgkmcnt(0)")
            if P == "A":
                for sl, gk in opt.get("pace", {}).get(b, ()):
                    while sl > 0: A("s_sleep %d" % min(sl, 127)); sl -= 127
                    touch(gk)
        A.pend(0)
        A("s_endpgm")
    tail = [(1, s_) for s_ in range(8)] + ["E1", "G2", "R2", "E2", "X3", "M3", "E3", "Q0", "Q1", "Q2"]
    vm = VM(); last = {}
    trvoff(4096)
    wsetup()
    A("""s_lshl_b32 s25, s7, 17
    s_lshl_b32 s18, s19, 7
    s_add_u32 s25, s25, s18
    s_barrier""")
    A.stamp(6); allsync(A, F2, 1); A.stamp(7)
    for s_ in range(8):
        A("s_add_u32 m0, s26, %d" % (hB[1][s_] * 8192))
        for k in range(4): A("buffer_load_dwordx4 v%d, s[12:15], s25 offen offset:%d lds" % (8 + k, 1024 * k))
        A("s_add_u32 s25, s25, %d" % (64 * 4096))
        last[(1, s_)] = vm.add(4)
    engine("B", ["P1"] + tail, vm, last)
    A.label("L_aload")
    A("s_barrier")
    trlane()
    wsetup()
    A("s_waitcnt lgkmcnt(0)")
    NL = opt.get("cpf_nl", 6)
    A("s_getpc_b64 s[58:59]")
    A.label("L_pc")
    A("""s_lshl_b32 s18, s4, 1
    s_add_u32 s18, s18, s7
    s_mul_i32 s18, s18, %d
    s_sub_u32 s58, s58, L_pc-%s_kernel
    s_subb_u32 s59, s59, 0
    s_min_u32 s18, s18, L_codeend-%s_kernel-%d""" % (NL * 128, NAME, NAME, NL * 128))
    for k in range(2 * NL): A("s_load_dword s%d, s[58:59], s18 offset:%d" % (80 + k, 64 * k))
    srd(A, 12, 52, WEND)
    engine("A", ["B0", "~1", "~2", "~3", "B1", "B2"] + tail, VM(), {})

FA, FB, ACC, CS, PS, RES, HF = 32, 96, 160, 136, 112, 224, 240
def tr_bases(A, dst, nu, ubase_s, extra_s=None, nr=3):
    A("""v_lshrrev_b32 v1, 2, v0
    v_lshlrev_b32 v1, 7, v1
    v_and_b32 v2, 3, v0
    v_lshl_add_u32 v1, v2, 3, v1
    v_bfe_u32 v2, v0, 3, 2""")
    if ubase_s: A("v_xor_b32 v2, %s, v2" % ubase_s)
    if extra_s: A("v_add_u32 v1, %s, v1" % extra_s)
    A("v_lshl_add_u32 v%d, v2, 5, v1" % dst)
    for k in range(1, nu): A("v_xor_b32 v%d, %d, v%d" % (dst + k, 32 * k, dst))
    for rg in range(1, nr):
        for k in range(nu): A("v_add_u32 v%d, 0x%x, v%d" % (dst + rg * nu + k, rg << 16, dst + k))

def gemm_main(A, g, hA, hB, init):
    F = 4 if g == 3 else 2
    SPS = 1 if g == 3 else 2
    nsteps = NS[g] * SPS
    vRA, vRB = 8, 20
    btr = g == 1
    def off(h, o):
        a = h * 8192 + o
        return a >> 16, a & 0xffff
    def reads(t):
        st, ks = t // SPS, t % SPS
        b = t & 1; la = []; lb = []
        for fn in range(F):
            d = FB + (b * F + fn) * 4
            if btr:
                for hh in range(2):
                    rg, o = off(hB[g][st], 4096 * ks + 2048 * hh)
                    lb.append("ds_read_b64_tr_b16 %s, v%d offset:%d" % (v(d + 2 * hh, 2), vRB + rg * 2 + fn, o))
            else:
                rg, o = off(hB[g][st], (1024 * fn) if g == 3 else (1024 * ks + 2048 * fn))
                lb.append("ds_read_b128 %s, v%d offset:%d" % (v(d, 4), vRB + rg, o))
        for fm in range(F):
            d = FA + (b * F + fm) * 4
            for hh in range(2):
                rg, o = off(hA[g][st], 4096 * ks + 2048 * hh)
                la.append("ds_read_b64_tr_b16 %s, v%d offset:%d" % (v(d + 2 * hh, 2), vRA + rg * F + fm, o))
        return lb + la
    def mfmas(t):
        b = t & 1; M = []
        if g == 1:
            for fn in range(F):
                fb = v(FB + (b * F + fn) * 4, 4)
                M.append("v_mfma_f32_16x16x32_bf16 %s, %s, %s, %s" % (v(PS + 4 * fn, 4), v(PS + 16, 4), fb, "0" if t == 0 else v(PS + 4 * fn, 4)))
                M.append("v_mfma_f32_16x16x32_bf16 %s, %s, %s, %s" % (v(PS + 8 + 4 * fn, 4), fb, fb, "0" if t == 0 else v(PS + 8 + 4 * fn, 4)))
        for fm in range(F):
            for fn in range(F):
                c = ACC + (fm * F + fn) * 4
                c0 = v(RES + (fm * F + fn) * 4, 4) if init else "0"
                M.append("v_mfma_f32_16x16x32_bf16 %s, %s, %s, %s" % (v(c, 4), v(FA + (b * F + fm) * 4, 4), v(FB + (b * F + fn) * 4, 4), c0 if t == 0 else v(c, 4)))
        return M
    A("s_barrier")
    for r in reads(0): A(r)
    hooks = init_hooks.get(g)
    if hooks: hooks(A)
    for t in range(nsteps):
        if (t + 1 < nsteps) and ((t + 1) % SPS == 0): A("s_barrier")
        R = reads(t + 1) if t + 1 < nsteps else []
        M = mfmas(t)
        A("s_waitcnt lgkmcnt(0)")
        if GS[0] == g and t % GS[1] == 0 and t // GS[1] < 8: A.stamp(1 + t // GS[1])
        for i, m in enumerate(M):
            A(m)
            for r in R[2 * i:2 * i + 2]: A(r)
        assert 2 * len(M) >= len(R)
init_hooks = {}
GS = [0, 1]

def cpoll(A, k, lanes, remote=None):
    A("""v_lshlrev_b32 v2, 4, v1
    v_add_u32 v2, %d, v2
    v_lshlrev_b32 v1, 2, v1
    v_add_u32 v1, %d, v1
    s_cmp_eq_u32 s1, 0
    s_cselect_b64 vcc, %s, -1
    v_cndmask_b32 v1, v1, v2, vcc""" % (FG[k], FL[k], remote or "0"))
    poll(A, 1, lanes)

def gemm_dir(A, g, hA, pre=None):
    ks = g != 3
    n = {2: 4, 3: 16, 4: 14}[g]
    NM, NN = (4, 4) if ks else (8, 2)
    RB = 64 if ks else FB
    D = 6 if ks else 8
    vm = VM(); ld = {}
    def acc(fm, fn):
        if not ks: return ACC + (fm * 2 + fn) * 4
        return ACC + 16 * ((fm >> 1) + 2 * (fn >> 1)) + ((fm & 1) * 2 + (fn & 1)) * 4
    def fb(t, fn): return RB + ((t % D) * NN + fn) * 4
    def ldB(t, fn):
        A("buffer_load_dwordx4 %s, v%d, s[12:15], s%d offen offset:%d" % (v(fb(t, fn), 4), 24 + fn if g == 2 else 5, 40 + fn, 1024 * (t & 3)))
        if t & 3 == 3 and t + 1 < n: A("s_add_u32 s%d, s%d, 4096" % (40 + fn, 40 + fn))
        ld[(t, fn)] = vm.add(1)
    def rdA(t):
        L = []
        for fm in range(NM):
            for hh in range(2):
                if ks: rg, o = 0, 8192 * ((t >> 1) % 5) + 4096 * (t & 1) + 2048 * hh
                else:
                    a_ = hA[g][t] * 8192 + 4096 * (fm >> 2) + 2048 * hh; rg, o = a_ >> 16, a_ & 0xffff
                L.append("ds_read_b64_tr_b16 %s, v%d offset:%d" % (v(FA + ((t & 1) * NM + fm) * 4 + 2 * hh, 2), 8 + rg * 4 + (fm & 3), o))
        return L
    for r in rdA(0): A(r)
    if pre: pre()
    for t in range(min(D, n)):
        for fn in range(NN): ldB(t, fn)
    if g == 3:
        for q in range(8): A("buffer_load_dwordx2 %s, v20, s[12:15], s35 offen offset:%d" % (v(HF + 2 * q, 2), 256 * (q & 3) + 128 * (q >> 2))); vm.add(1)
    if g == 2: A("s_barrier")
    bar = {3: (8,), 4: (4, 9), 2: ()}[g]
    for t in range(n):
        R = rdA(t + 1) if t + 1 < n else []
        if g == 3 and t == n - 1: R = ["ds_read_b128 %s, v5 offset:%d" % (v(FA + 4 * i, 4), 3 * 8192 + 1024 * i) for i in range(8)]
        if ks: A("s_waitcnt lgkmcnt(0)")
        if t in bar: A("s_waitcnt lgkmcnt(0)\ns_barrier")
        if GS[0] == g and t % GS[1] == 0 and t // GS[1] < 8: A.stamp(1 + t // GS[1])
        order = [(fm, fn) for fn in range(NN) for fm in range(NM)] if ks else [(fm, fn) for fm in range(NM) for fn in range(NN)]
        for i, (fm, fn) in enumerate(order):
            if (fm == 0): vm.wait(A, ld[(t, fn)])
            if not ks and fn == 0: A("s_waitcnt lgkmcnt(%d)" % min(15, 14 - 2 * fm + min(i, len(R))))
            c = acc(fm, fn)
            c0 = v(RES + c - ACC, 4) if (ks and c < ACC + 16) else "0"
            A("v_mfma_f32_16x16x32_bf16 %s, %s, %s, %s" % (v(c, 4), v(FA + ((t & 1) * NM + fm) * 4, 4), v(fb(t, fn), 4), c0 if t == 0 else v(c, 4)))
            if i < len(R): A(R[i])
            if fm == NM - 1 and t + D < n: ldB(t + D, fn)
    if ks:
        for q in range(1, 4):
            for i in range(4): A("ds_write_b128 v12, %s offset:%d" % (v(ACC + 16 * q + 4 * i, 4), 4096 * (q - 1) + 1024 * i))
        A("s_waitcnt lgkmcnt(0)\ns_barrier")
        for q in range(1, 4):
            for i in range(4): A("ds_read_b128 %s, v%d offset:%d" % (v(RB + 16 * (q - 1) + 4 * i, 4), 12 + q, 4096 * (q - 1) + 1024 * i))
        for q in range(1, 4):
            for i in range(4):
                A("s_waitcnt lgkmcnt(%d)" % (11 - 4 * (q - 1) - i))
                for h in range(2):
                    A("v_pk_add_f32 %s, %s, %s" % (v(ACC + 4 * i + 2 * h, 2), v(ACC + 4 * i + 2 * h, 2), v(RB + 16 * (q - 1) + 4 * i + 2 * h, 2)))

def ks_setup(A, g):
    C = 512 if g == 2 else 1792
    for q in range(4):
        A("s_xor_b32 s18, s5, %d" % q)
        if g == 2: A("s_xor_b32 s18, s18, 2\ns_lshr_b32 s24, s18, 1\ns_and_b32 s18, s18, 1\ns_lshl_b32 s24, s24, 17\ns_lshl_b32 s18, s18, 14\ns_add_u32 s18, s18, s24")
        else: A("s_mul_i32 s18, s18, 40960")
        A("v_add_u32 v%d, s18, v5" % (12 + q))
        if q == 0: A("s_mov_b32 s27, s18")
    A("s_lshl_b32 s24, s21, 1")
    tr_bases(A, 8, 4, "s24", "s27", 1)
    A("""s_lshl_b32 s18, s19, 2
    s_lshl_b32 s24, s22, 1
    s_add_u32 s18, s18, s24
    s_mul_i32 s40, s18, %d
    s_xor_b32 s18, s18, 2
    s_mul_i32 s42, s18, %d
    s_mul_i32 s18, s5, %d
    s_add_u32 s18, s18, %d
    s_add_u32 s40, s40, s18
    s_add_u32 s42, s42, s18
    s_add_u32 s41, s40, %d
    s_add_u32 s43, s42, %d""" % (32 * C, 32 * C, 8 * C, H1 - 16384 if g == 2 else H3, 32 * C, 32 * C))
    if g == 2:
        A("""s_lshr_b32 s24, s5, 1
        s_add_u32 s24, s24, 1
        s_sub_u32 s18, 0, s24
        s_bitcmp1_b32 s5, 0
        s_cselect_b32 s24, s24, s18
        s_add_u32 s18, s24, 16
        v_add_u32 v1, s18, v7
        v_lshrrev_b32 v2, 4, v1
        v_and_b32 v1, 15, v1
        v_lshlrev_b32 v2, 14, v2
        v_lshl_add_u32 v2, v1, 4, v2
        v_lshl_add_u32 v2, v4, 8, v2
        v_bfrev_b32 v3, -2
        s_add_u32 s24, s24, s29""")
        for fn in range(4):
            A("s_xor_b32 s18, s29, 32\ns_sub_u32 s18, s18, s29\ns_add_u32 s18, s18, s24" if fn == 2 else "")
            A("""v_add_u32 v1, %s, v7
            v_add_u32 v1, %d, v1
            v_cmp_gt_u32 vcc, 2048, v1
            v_cndmask_b32 v%d, v3, v2, vcc""" % ("s24" if fn < 2 else "s18", 16 * (fn & 1), 24 + fn))

def colsum(A, g, hA):
    F = 2
    SPS = 1 if g == 3 else 2
    vb = 20 if g == 3 else 8
    for i in range(4): A("v_mov_b32 v%d, 0x3f803f80" % (PS + 16 + i))
    n = NS[g] * SPS
    def rd(t):
        for fm in range(F):
            for hh in range(2):
                a = hA[g][t // SPS] * 8192 + 4096 * (t % SPS) + 2048 * hh
                A("ds_read_b64_tr_b16 %s, v%d offset:%d" % (v(FA + ((t & 3) * F + fm) * 4 + 2 * hh, 2), vb + (a >> 16) * F + fm, a & 0xffff))
    rd(0); rd(1); rd(2)
    for t in range(n):
        if t + 3 < n: rd(t + 3)
        A("s_waitcnt lgkmcnt(%d)" % (2 * F * min(3, n - 1 - t)))
        for fm in range(F):
            A("v_mfma_f32_16x16x32_bf16 %s, %s, %s, %s" % (v(CS + 4 * fm, 4), v(FA + ((t & 3) * F + fm) * 4, 4), v(PS + 16, 4), "0" if t == 0 else v(CS + 4 * fm, 4)))

def gen_compute(A, hA, hB, opt):
    A("""s_lshr_b32 s6, s5, 1
    s_and_b32 s7, s5, 1
    s_lshl_b32 s16, s3, 6
    s_lshl_b32 s17, s4, 1
    s_add_u32 s16, s16, s17
    s_add_u32 s16, s16, s6
    s_lshl_b32 s25, s16, 8
    s_lshl_b32 s17, s16, 1
    v_lshl_add_u32 v2, s7, 6, v0
    v_lshlrev_b32 v3, 1, v2
    v_xor_b32 v4, 128, v3
    v_mov_b32 v6, 0
    s_waitcnt lgkmcnt(0)""")
    for i, r in enumerate((8, 9, 10, 11)):
        srd(A, 8, 38 + 2 * i, 0x20000)
        A("buffer_load_ushort v%d, v3, s[8:11], s25 offen" % r)
        if i >= 2: A("buffer_load_ushort v%d, v4, s[8:11], s25 offen" % (r + 2))
    srd(A, 8, 46, 1024); A("buffer_load_ushort v15, v6, s[8:11], s17 offen")
    srd(A, 8, 48, 1024); A("buffer_load_ushort v72, v6, s[8:11], s17 offen")
    srd(A, 12, 52, WEND)
    A("""s_barrier
    s_mul_i32 s26, s6, 33280
    s_add_u32 s26, s26, %d
    v_lshl_add_u32 v5, v2, 2, s26
    v_and_b32 v6, 15, v0
    v_sub_u32 v6, 15, v6
    v_bfe_u32 v7, v0, 4, 2
    s_lshl_b32 s18, s5, 2
    s_add_u32 s18, s18, %d
    v_mov_b32 v73, s18
    v_xor_b32 v74, 4, v73
    s_cmp_eq_u32 s7, 0""" % (TB, SYNCW))
    for tt in range(4):
        A("s_movk_i32 s28, %d\ns_cselect_b32 s28, %d, s28" % (256 * (tt + 4), 256 * tt))
        A("s_cselect_b32 s29, %d, %d" % (ZSH[tt], ZSH[tt + 4]))
        A("s_cselect_b32 s30, %d, %d" % (ZRB[tt], ZRB[tt + 4]))
        d = 66 + tt
        A("v_add_u32 v%d, s28, v6\nv_cvt_f32_u32 v%d, v%d" % (d, d, d))
        bf16r(A, d, d)
        A("v_cvt_u32_f32 v%d, v%d\nv_subrev_u32 v%d, s28, v%d\nv_lshrrev_b32 v%d, s29, v%d\nv_add_u32 v%d, s30, v%d" % ((d,) * 8))
        A("v_mul_u32_u24 v%d, %d, v%d\nv_lshl_add_u32 v%d, v7, 4, v%d\nv_add_u32 v%d, s26, v%d" % (d, RP, d, d, d, d, d))
    A("""v_add_u32 v70, 47, v6
    v_mul_u32_u24 v70, %d, v70
    v_lshl_add_u32 v70, v7, 4, v70
    v_add_u32 v70, s26, v70
    v_and_b32 v71, 15, v0
    v_lshlrev_b32 v71, 5, v71
    v_lshl_add_u32 v71, v7, 3, v71
    s_waitcnt vmcnt(0)
    v_lshlrev_b32 v15, 16, v15
    v_lshlrev_b32 v72, 16, v72
    s_nop 0
    v_readfirstlane_b32 s24, v15
    v_readfirstlane_b32 s23, v72""" % RP)
    A.stamp(1)
    gen_kgen_tables(A, 5)
    pairsync(A, 1, 73, 74, 75)
    A.stamp(2)
    for ks in range(8): A("ds_read_b128 %s, v70 offset:%d" % (v(16 + 4 * ks, 4), 64 * ks))
    def rdA(tt):
        for ks in range(8): A("ds_read_b128 %s, v%d offset:%d" % (v(80 + 32 * (tt & 1) + 4 * ks, 4), 66 + tt, 64 * ks))
    rdA(0)
    for tt in range(4):
        if tt < 3: rdA(tt + 1)
        for ks in range(8):
            A("s_waitcnt lgkmcnt(%d)" % ((15 if tt < 3 else 7) - ks))
            A("v_mfma_f32_16x16x32_f16 %s, %s, %s, %s" % (v(48 + 4 * tt, 4), v(80 + 32 * (tt & 1) + 4 * ks, 4), v(16 + 4 * ks, 4), "0" if ks == 0 else v(48 + 4 * tt, 4)))
    A("v_readfirstlane_b32 s26, v14\ns_mul_i32 s10, s6, 33280\ns_add_u32 s10, s10, %d" % TB)
    pairsync(A, 2, 73, 74, 75)
    A("""s_mov_b32 s27, s26
    s_lshl_b32 s18, s7, 11
    s_sub_u32 s18, s10, s18
    v_add_u32 v76, s18, v71
    v_mov_b32 v8, 0
    v_and_b32 v9, 15, v0
    s_mul_i32 s18, s7, 4160
    s_add_u32 s18, s18, s10
    v_lshl_add_u32 v9, v9, 2, s18""")
    for tt in range(4):
        r = 48 + 4 * tt; o = 3584 - 512 * tt
        A("v_cvt_pk_f16_f32 v16, v%d, v%d\nv_cvt_pk_f16_f32 v17, v%d, v%d\nv_cvt_pk_f16_f32 v18, v%d, v%d" % (r, r + 1, r + 2, r + 3, r + 1, r + 2))
        A("ds_write_b64 v76, v[16:17] offset:%d" % (4160 + o))
        A("ds_write_b32 v76, v18 offset:%d" % o)
        A("ds_write_b16_d16_hi v76, v17 offset:%d" % (o + 4))
        if tt == 3: A("""v_subrev_u32 v77, 2, v76
            s_sub_u32 s18, s10, 2048
            v_add_u32 v78, 8400, v76
            v_cmp_gt_u32 vcc, s18, v77
            v_cndmask_b32 v77, v77, v78, vcc
            ds_write_b16 v77, v16 offset:%d""" % o)
        else: A("ds_write_b16 v76, v16 offset:%d" % (o - 2))
    A("""ds_write_b32 v9, v8 offset:4096
    v_mov_b32 v9, s10
    ds_write_b16 v9, v8 offset:4094
    v_and_b32 v6, 15, v0
    v_and_b32 v10, 1, v0
    v_mul_u32_u24 v10, 4160, v10
    v_lshl_add_u32 v10, v7, 4, v10
    v_bfe_u32 v11, v0, 1, 3
    v_lshlrev_b32 v11, 2, v11
    v_sub_u32 v10, v10, v11
    s_lshl_b32 s18, s7, 6
    s_sub_u32 s29, s10, s18
    s_add_u32 s29, s29, %d
    v_add_u32 v12, s29, v10
    v_subrev_u32 v13, 1024, v12
    v_subrev_u32 v14, 2048, v12
    v_subrev_u32 v15, 3072, v12
    s_mul_i32 s21, s6, 8704
    s_add_u32 s21, s21, %d
    s_sub_u32 s28, s21, s18
    s_add_u32 s28, s28, 96
    v_lshlrev_b32 v10, 5, v6
    v_lshl_add_u32 v11, v7, 4, v10
    v_add_u32 v11, s28, v11
    v_lshl_add_u32 v10, v7, 3, v10
    s_lshl_b32 s18, s7, 11
    s_add_u32 s21, s21, s18
    v_mov_b32 v8, v73
    v_mov_b32 v9, v74
    s_waitcnt lgkmcnt(0)""" % (4060 - 64 * 14, R0))
    A.stamp(1)
    A("s_barrier")
    A("v_mov_b32 v1, %d\nds_read_b64 v[2:3], v1\ns_waitcnt lgkmcnt(0)\nv_readfirstlane_b32 %s, v2\nv_readfirstlane_b32 s1, v3\ns_and_b32 %s, %s, -2" % (TOKW, TOK, TOK, TOK))
    A.stamp(4)
    conv_main(A, 12, 11, 32, 64, 16)
    A.stamp(5)
    A("""s_lshl_b32 s18, s5, 12
    s_add_u32 s18, s18, %d
    v_lshl_add_u32 v5, v0, 4, s18
    v_xor_b32 v6, 4096, v5
    v_add_u32 v7, s21, v10
    s_lshl_b32 s28, s16, 12
    s_lshl_b32 s29, s7, 11
    s_add_u32 s28, s28, s29
    s_nop 4
    s_cmp_eq_u32 s7, 0
    s_cbranch_scc1 L_cv_a""" % RED)
    for t in range(4): A("ds_write_b128 v5, %s offset:%d" % (v(32 + 4 * t, 4), 1024 * t))
    for k in range(16): A("v_mov_b32 v%d, v%d" % (16 + k, 48 + k))
    A("s_branch L_cv_b")
    A.label("L_cv_a")
    for t in range(4): A("ds_write_b128 v5, %s offset:%d" % (v(48 + 4 * t, 4), 1024 * t))
    for k in range(16): A("v_mov_b32 v%d, v%d" % (16 + k, 32 + k))
    A.label("L_cv_b")
    for t in range(4):
        A("ds_read_b64 %s, v7 offset:%d" % (v(80 + 2 * t, 2), 4608 + 512 * t))
        A("ds_read_b64 %s, v7 offset:%d" % (v(88 + 2 * t, 2), 512 + 512 * t))
    pairsync(A, 3, 8, 9, 100)
    for t in range(4): A("ds_read_b128 %s, v6 offset:%d" % (v(64 + 4 * t, 4), 1024 * t))
    for t in range(4):
        A("s_waitcnt lgkmcnt(%d)" % (3 - t))
        for h in range(2):
            r = 16 + 4 * t + 2 * h; x = 80 + 2 * t + h; u = 88 + 2 * t + h
            A("v_pk_add_f32 %s, %s, %s" % (v(r, 2), v(r, 2), v(64 + 4 * t + 2 * h, 2)))
            A("v_lshlrev_b32 v96, 16, v%d\nv_and_b32 v97, 0xffff0000, v%d" % (x, x))
            A("v_pk_fma_f32 %s, %s, s[26:27], v[96:97]" % (v(r, 2), v(r, 2)))
            A("v_fma_mix_f32 v%d, v%d, s23, v%d op_sel_hi:[1,0,0]" % (r, u, r))
            A("v_fma_mix_f32 v%d, v%d, s23, v%d op_sel:[1,0,0] op_sel_hi:[1,0,0]" % (r + 1, u, r + 1))
            A("v_cvt_pk_bf16_f32 v%d, v%d, v%d" % (98 + 2 * t + h, r, r + 1))
        A("buffer_store_dwordx2 %s, v10, s[12:15], s28 offen offset:%d sc1" % (v(98 + 2 * t, 2), 512 * t))
    A.stamp(6)
    A("""v_mov_b32 v1, %d
    v_mov_b32 v2, 1
    s_mov_b64 exec, 1
    s_waitcnt vmcnt(0)
    ds_add_rtn_u32 v2, v1, v2
    v_mov_b32 v1, %d
    s_lshl_b32 s18, s2, 4
    s_waitcnt lgkmcnt(0)
    v_readfirstlane_b32 s19, v2
    v_mov_b32 v2, %s
    s_cmp_lg_u32 s19, 3
    s_cbranch_scc1 L_nof2
    buffer_store_dword v2, v1, s[12:15], s18 offen sc1""" % (CNTW, F2, TOK))
    A.label("L_nof2")
    A("s_mov_b64 exec, -1")
    A.stamp(7)
    A("""s_and_b32 s21, s5, 1
    s_lshr_b32 s22, s5, 1
    s_lshr_b32 s19, s4, 3
    s_lshl_b32 s18, s3, 2
    s_add_u32 s19, s19, s18
    s_and_b32 s20, s4, 7
    s_lshl_b32 s29, s19, 6
    s_lshl_b32 s18, s22, 5
    s_add_u32 s29, s29, s18
    s_lshl_b32 s17, s20, 1
    s_add_u32 s17, s17, s21
    s_lshl_b32 s16, s29, 10
    s_lshl_b32 s18, s17, 10
    s_add_u32 s16, s16, s18
    s_lshl_b32 s24, s21, 1
    s_lshl_b32 s25, s22, 1
    s_lshl_b32 s23, s19, 5
    s_lshl_b32 s18, s22, 4
    s_add_u32 s23, s23, s18
    s_add_u32 s23, s23, s17
    s_lshl_b32 s23, s23, 2
    v_lshrrev_b32 v4, 4, v0
    v_lshlrev_b32 v5, 4, v0
    v_and_b32 v7, 15, v0
    s_mov_b32 s90, %s""" % f32(1.0 / 512))
    tr_bases(A, 8, 2, "s24")
    tr_bases(A, 20, 2, "s25")
    PG = opt.get("pg", 1)
    gelu_sconst(A)
    A("s_barrier")
    colsum(A, 1, hA)
    A.stamp(8)
    gemm_main(A, 1, hA, hB, False)
    assert hB[1] == list(range(8, 16))
    A("s_lshl_b32 s18, s17, 12\ns_add_u32 s18, s18, 65536\nv_add_u32 v1, s18, v20\nv_add_u32 v2, s18, v21")
    for fn in range(2):
        for hh in range(2): A("ds_read_b64_tr_b16 %s, v%d offset:%d" % (v(HF + 4 * fn + 2 * hh, 2), 1 + fn, 2048 * hh))
    SA, GA, Tm = PS, PS + 8, FA
    A("""v_and_b32 v3, 3, v0
    v_lshrrev_b32 v6, 2, v7
    v_cmp_eq_u32 s[40:41], 1, v3
    v_cmp_eq_u32 s[42:43], 2, v3
    v_cmp_eq_u32 s[44:45], 3, v3
    v_cmp_eq_u32 s[46:47], v6, v4
    s_waitcnt lgkmcnt(0)
    s_barrier""")
    A.stamp(9)
    for fn in range(2):
        g = GA + 4 * fn
        A("v_cndmask_b32 v%d, v%d, v%d, s[40:41]" % (g, g, g + 1))
        A("v_cndmask_b32 v%d, v%d, v%d, s[42:43]" % (g, g, g + 2))
        A("v_cndmask_b32 v%d, v%d, v%d, s[44:45]" % (g, g, g + 3))
        A("v_cndmask_b32 v%d, 0, v%d, s[46:47]" % (g, g))
        A("v_mov_b32 v%d, v%d" % (g + 1, g))
    for fn in range(2): A("v_permlane32_swap_b32 v%d, v%d" % (GA + 4 * fn, GA + 4 * fn + 1))
    for fn in range(2):
        g = GA + 4 * fn
        A("v_add_f32 v%d, v%d, v%d\nv_mov_b32 v%d, v%d" % (g, g, g + 1, g + 1, g))
    for fn in range(2): A("v_permlane16_swap_b32 v%d, v%d" % (GA + 4 * fn, GA + 4 * fn + 1))
    A("s_add_u32 s33, s16, %d\ns_add_u32 s27, s16, %d" % (H1, H1 + 16384))
    for fn in range(2):
        g = GA + 4 * fn; sa = SA + 4 * fn
        A("v_add_f32 v%d, v%d, v%d" % (g, g, g + 1))
        rowstats(A, sa, g, 512, g + 1, sa + 2, sa + 3)
        A("v_sub_f32 v%d, v%d, v%d" % (sa, sa, sa + 2))
        A("v_mul_f32 v%d, v%d, v%d" % (g, g, sa + 3))
        A("v_mul_f32 v%d, v%d, v%d" % (sa, sa, sa + 3))
        A("v_mul_f32 v%d, v%d, v%d" % (g, g, sa + 3))
        bf16r(A, sa, sa); bf16r(A, g, g)
        A("v_add_f32 v%d, %s, v%d" % (g, f32(1e-5), g))
        A("v_fma_f32 v%d, -v%d, v%d, -v%d" % (sa, sa, g + 1, sa + 2))
        bf16r(A, g, g)
        A("v_sqrt_f32 v%d, v%d" % (g, g))
        bf16r(A, g, g)
        A("v_rcp_f32 v%d, v%d" % (g + 1, g))
        A("v_mul_f32 v%d, v%d, v%d" % (g + 1, g + 1, sa + 3))
        if not PG: gelu_consts(A, g + 1, g + 2, g)
    for fn in range(2):
        g = GA + 4 * fn; sa = SA + 4 * fn
        o = Tm + 16 + 4 * fn
        if PG: gelu8p(A, ACC + 4 * fn, ACC + 8 + 4 * fn, CS, sa, g + 1, Tm, o)
        else: gelu8(A, ACC + 4 * fn, ACC + 8 + 4 * fn, CS, sa, g + 2, g, Tm, o)
        A("buffer_store_dwordx4 %s, v5, s[12:15], %s offen sc1" % (v(o, 4), "s27" if fn else "s33"))
    for fn in range(2):
        mu = SA + 4 * fn + 2
        A("v_mul_f32 v%d, -v%d, v%d" % (mu, mu, mu + 1))
        for i in range(4):
            h = HF + 4 * fn + i; t = RES + ((i >> 1) * 2 + fn) * 4 + 2 * (i & 1)
            A("v_lshlrev_b32 v%d, 16, v%d\nv_and_b32 v%d, 0xffff0000, v%d" % (t, h, t + 1, h))
            A("v_pk_fma_f32 %s, %s, %s, %s op_sel:[0,1,0] op_sel_hi:[1,1,0]" % (v(t, 2), v(t, 2), v(mu, 2), v(mu, 2)))
    setflag(A, 3, "s23")
    A.stamp(10)
    ks_setup(A, 2)
    def pre2():
        A("""v_lshrrev_b32 v1, 2, v0
        v_lshlrev_b32 v1, 4, v1
        s_bitcmp1_b32 s5, 0
        s_cselect_b32 s18, 32, -16
        v_mov_b32 v2, s18
        v_cmp_lt_u32 vcc, 7, v0
        v_cndmask_b32 v1, v1, v2, vcc
        v_and_b32 v2, 3, v0
        s_lshl_b32 s18, s19, 5
        s_lshl_b32 s24, s5, 2
        s_add_u32 s18, s18, s24
        v_add3_u32 v1, v1, v2, s18
        v_and_b32 v1, 1023, v1
        s_and_b32 s18, s5, 1
        s_mul_i32 s18, s18, 3
        s_and_b32 s24, s19, 3
        s_mov_b32 s45, 0
        s_cmp_eq_u32 s18, s24
        s_cselect_b32 s44, 0xf00, 0""")
        cpoll(A, 3, "0xfff", "s[44:45]")
        A.stamp(2)
    gemm_dir(A, 2, hA, pre2)
    A("s_add_u32 s24, s16, %d\ns_add_u32 s27, s16, %d" % (X1, X1 + 16384))
    for fn in range(2):
        src = [ACC + 4 * fn, ACC + 4 * fn + 2, ACC + 8 + 4 * fn, ACC + 8 + 4 * fn + 2]
        for i in range(4): A("v_cvt_pk_bf16_f32 v%d, v%d, v%d" % (Tm + 16 + 4 * fn + i, src[i], src[i] + 1))
        A("buffer_store_dwordx4 %s, v5, s[12:15], %s offen sc1" % (v(Tm + 16 + 4 * fn, 4), "s24" if fn == 0 else "s27"))
    for fn in range(2):
        src = [ACC + 4 * fn, ACC + 4 * fn + 2, ACC + 8 + 4 * fn, ACC + 8 + 4 * fn + 2]
        sm = Tm + 8 + 4 * fn
        A("v_pk_add_f32 %s, %s, %s" % (v(sm, 2), v(src[0], 2), v(src[1], 2)))
        A("v_pk_mul_f32 %s, %s, %s" % (v(sm + 2, 2), v(src[0], 2), v(src[0], 2)))
        A("v_pk_add_f32 %s, %s, %s" % (v(sm, 2), v(sm, 2), v(src[2], 2)))
        A("v_pk_fma_f32 %s, %s, %s, %s" % (v(sm + 2, 2), v(src[1], 2), v(src[1], 2), v(sm + 2, 2)))
        A("v_pk_add_f32 %s, %s, %s" % (v(sm, 2), v(sm, 2), v(src[3], 2)))
        A("v_pk_fma_f32 %s, %s, %s, %s" % (v(sm + 2, 2), v(src[2], 2), v(src[2], 2), v(sm + 2, 2)))
        A("v_add_f32 v%d, v%d, v%d" % (sm, sm, sm + 1))
        A("v_pk_fma_f32 %s, %s, %s, %s" % (v(sm + 2, 2), v(src[3], 2), v(src[3], 2), v(sm + 2, 2)))
        A("v_add_f32 v%d, v%d, v%d" % (sm + 2, sm + 2, sm + 3))
    s0, s1 = Tm + 8, Tm + 12
    A("v_permlane32_swap_b32 v%d, v%d\nv_permlane32_swap_b32 v%d, v%d" % (s0, s0 + 2, s1, s1 + 2))
    A("v_add_f32 v%d, v%d, v%d\nv_add_f32 v%d, v%d, v%d" % (s0, s0, s0 + 2, s1, s1, s1 + 2))
    A("v_permlane16_swap_b32 v%d, v%d" % (s0, s1))
    A("""v_add_f32 v%d, v%d, v%d
    v_and_b32 v1, 31, v0
    v_lshlrev_b32 v1, 3, v1
    v_lshrrev_b32 v2, 5, v0
    v_lshl_add_u32 v1, v2, 2, v1
    s_lshl_b32 s24, s29, 7
    s_lshl_b32 s27, s17, 8
    s_add_u32 s24, s24, s27
    s_add_u32 s24, s24, %d
    buffer_store_dword v%d, v1, s[12:15], s24 offen%s""" % (s0, s0, s1, P3, s0, " sc1"))
    A("s_barrier")
    A.stamp(3)
    for fn in range(2):
        for i in range(4):
            h = HF + 4 * fn + i; o = ((i >> 1) * 2 + fn) * 4 + 2 * (i & 1); t = RES + o
            A("v_lshlrev_b32 v%d, 16, v%d\nv_and_b32 v%d, 0xffff0000, v%d" % (t, h, t + 1, h))
            A("v_pk_add_f32 %s, %s, %s" % (v(t, 2), v(t, 2), v(ACC + o, 2)))
    A("s_cmp_lt_u32 s4, 28\ns_cbranch_scc1 L_c_g3")
    setflag(A, 4, "s23")
    A("s_waitcnt vmcnt(0)\ns_barrier")
    if opt.get("idle4"):
        srd(A, 8, 54, 0x1c0000)
        A("""s_and_b32 s18, s4, 1
        s_lshl_b32 s18, s18, 2
        s_add_u32 s18, s18, s5
        s_lshl_b32 s18, s18, 13
        v_lshlrev_b32 v1, 7, v0
        v_add_u32 v1, s18, v1""")
        L = opt["idle4"]
        A("s_sleep %d" % opt.get("isl", 1))
        for k in range(len(L) // 2):
            A("s_bitcmp1_b32 s4, 1\ns_cselect_b32 s18, %d, %d\ns_lshl_b32 s18, s18, 16" % (L[2 * k + 1], L[2 * k]))
            A("buffer_load_dword v31, v1, s[8:11], s18 offen")
    A("s_branch L_c_g4")
    A.label("L_c_g3")
    A("""s_cmp_ge_u32 s4, 14
    s_cselect_b32 s32, 1, 0
    s_cselect_b32 s33, 14, 0
    s_sub_u32 s33, s4, s33
    s_lshl_b32 s18, s3, 1
    s_add_u32 s32, s32, s18
    s_lshl_b32 s32, s32, 2
    s_add_u32 s32, s32, s5
    v_lshlrev_b32 v3, 3, v7
    v_lshl_add_u32 v3, v4, 10, v3
    s_lshl_b32 s35, s32, 12
    s_add_u32 s35, s35, %d""" % P3)
    tr_bases(A, 8, 4, None)
    A("v_mov_b32 v20, v3\ns_barrier")
    setflag(A, 4, "s23")
    A.stamp(12)
    def pre3():
        A("""s_lshl_b32 s24, s32, 4
        v_add_u32 v1, s24, v0
        s_lshl_b32 s40, s32, 15
        s_add_u32 s40, s40, %d
        s_add_u32 s41, s40, 16384""" % X1)
        cpoll(A, 4, "0xffff")
        A.stamp(4)
    gemm_dir(A, 3, hA, pre3)
    A("s_waitcnt lgkmcnt(0)\ns_barrier")
    A.stamp(13)
    A("""s_mul_i32 s24, s32, %d
    s_lshl_b32 s27, s33, 12
    s_add_u32 s24, s24, s27
    s_add_u32 s24, s24, %d""" % (64 * 1792, H3))
    F = 2; T3 = FA + 32
    for fn in range(F):
        q = HF + 8 * fn; p = HF + 4 * fn
        A("v_pk_add_f32 %s, %s, %s" % (v(q, 2), v(q, 2), v(q + 2, 2)))
        A("v_pk_add_f32 %s, %s, %s" % (v(q + 4, 2), v(q + 4, 2), v(q + 6, 2)))
        A("v_pk_add_f32 %s, %s, %s" % (v(p, 2), v(q, 2), v(q + 4, 2)))
    for sw in (32, 16):
        for fn in range(F):
            p = HF + 4 * fn
            A("v_mov_b32 v%d, v%d\nv_mov_b32 v%d, v%d" % (p + 2, p, p + 3, p + 1))
        for fn in range(F):
            p = HF + 4 * fn
            A("v_permlane%d_swap_b32 v%d, v%d\nv_permlane%d_swap_b32 v%d, v%d" % (sw, p, p + 2, sw, p + 1, p + 3))
        for fn in range(F):
            p = HF + 4 * fn
            A("v_pk_add_f32 %s, %s, %s" % (v(p, 2), v(p, 2), v(p + 2, 2)))
    for fn in range(F):
        p = HF + 4 * fn
        rowstats(A, p, p + 1, 512, HF + 8 + fn, p + 2, p + 3)
        A("v_mul_f32 v%d, -1.0, v%d" % (p + 2, p + 2))
    for fn in range(F):
        for pr in range(4):
            o = T3 + 16 + 4 * pr
            gelu8p(A, ACC + ((2 * pr) * 2 + fn) * 4, ACC + ((2 * pr + 1) * 2 + fn) * 4, FA + 8 * pr, HF + 4 * fn + 2, HF + 4 * fn + 3, T3, o)
            A("buffer_store_dwordx4 %s, v5, s[12:15], s24 offen offset:%d%s" % (v(o, 4), 1024 * pr, opt.get("sh3", " sc1")))
        if fn < F - 1: A("s_add_u32 s24, s24, %d" % (32 * 1792))
    A("""s_lshl_b32 s18, s32, 4
    s_add_u32 s18, s18, s33
    s_lshl_b32 s18, s18, 2""")
    setflag(A, 5, "s18")
    A.label("L_c_g4")
    A.stamp(14)
    ks_setup(A, 4)
    A("s_barrier")
    def pre4():
        A("""s_lshl_b32 s18, s19, 5
        s_mul_i32 s24, s5, 7
        s_lshr_b32 s24, s24, 1
        s_add_u32 s18, s18, s24
        v_lshrrev_b32 v1, 2, v0
        v_and_b32 v2, 3, v0
        v_lshl_add_u32 v1, v1, 4, v2
        v_add_u32 v1, s18, v1""")
        cpoll(A, 5, "0xff")
        A.stamp(5)
    gemm_dir(A, 4, hA, pre4)
    A.stamp(6)
    srd(A, 8, 50, 0x200000)
    A("""v_lshlrev_b32 v1, 10, v7
    v_and_b32 v2, 1, v4
    v_lshl_add_u32 v1, v2, 5, v1
    v_lshrrev_b32 v2, 1, v4
    v_lshl_add_u32 v1, v2, 4, v1
    s_lshl_b32 s24, s29, 10
    s_lshl_b32 s27, s17, 6
    s_add_u32 s24, s24, s27
    s_add_u32 s27, s24, 16384""")
    for fn in range(2):
        src = [ACC + 4 * fn, ACC + 4 * fn + 2, ACC + 8 + 4 * fn, ACC + 8 + 4 * fn + 2]
        o = Tm + 4 * fn
        for i in range(4): A("v_cvt_pk_bf16_f32 v%d, v%d, v%d" % (o + i, src[i], src[i] + 1))
        A("v_permlane16_swap_b32 v%d, v%d\nv_permlane16_swap_b32 v%d, v%d" % (o, o + 2, o + 1, o + 3))
        A("buffer_store_dwordx4 %s, v1, s[8:11], %s offen" % (v(o, 4), "s24" if fn == 0 else "s27"))
    A.pend(0)

def _S(g, rng, p, at): return {(g, s): (p, at) for s in rng}
DEF = dict(at={(1, s): "B1" for s in range(8)}, bt=[1], idle4=W4ORD[20:],
           stg={**_S(4, W4ORD[20:], "A", "E3"), **_S(4, W4ORD[11:16], "B", "M3"), **_S(3, range(12, 16), "B", "G2")},
           touch={"B1": [(2, 0), (3, 0)], (1, 2): [(3, 1), (3, 2), (3, 3)], "G2": [(4, W4ORD[0:8]), (4, W4ORD[8:16])], "M3": [(4, W4ORD[16:20])]})
def gen_fused(A, opt={}):
    opt = dict(DEF, **opt)
    hA, hB, J = schedule(opt)
    GS[:] = opt.get("gs", (0, 1))
    A.l.append(".p2align 8"); A.label(NAME + "_kernel")
    A.pstart()
    A("""s_cmp_ge_u32 s2, 256
    s_cbranch_scc1 L_end
    v_lshrrev_b32 v1, 6, v0
    v_and_b32 v0, 63, v0
    v_readfirstlane_b32 s5, v1
    s_load_dwordx2 s[52:53], s[0:1], 112
    s_and_b32 s3, s2, 7
    s_lshr_b32 s4, s2, 3
    s_cmp_ge_u32 s5, 4
    s_cbranch_scc1 L_loader
    s_load_dwordx8 s[36:43], s[0:1], 0
    s_load_dwordx4 s[44:47], s[0:1], 32
    s_load_dwordx2 s[48:49], s[0:1], 48
    s_load_dwordx2 s[50:51], s[0:1], 96
    s_load_dwordx2 s[54:55], s[0:1], 88
    v_lshrrev_b32 v1, 2, v0
    v_mul_u32_u24 v1, %d, v1
    v_and_b32 v2, 3, v0
    v_lshl_add_u32 v1, v2, 2, v1
    v_add_u32 v1, 0x10000, v1
    v_mov_b32 v2, 0
    s_mov_b64 exec, 0xfff
    ds_write_b32 v1, v2 offset:%d
    s_mov_b64 exec, -1""" % (RP, SYNCW - 65536))
    gen_compute(A, hA, hB, opt)
    A.label("L_end")
    A("s_endpgm")
    A.label("L_loader")
    A("""s_load_dwordx2 s[36:37], s[0:1], 0
    s_load_dwordx8 s[40:47], s[0:1], 64
    s_load_dwordx2 s[50:51], s[0:1], 104""")
    gen_loader(A, hA, hB, J, opt)
    A.label("L_codeend")
    return (NAME + "_kernel", 256, 512, 163840, 256, 0)
```

```python
import sys
sys.path.insert(0, "work")
from hx import *
import gen, g_f5
from g_f5 import *
def buildf(path, prof=False, opt={}):
    gen.build([lambda A: gen_fused(A, opt)], path, prof)
    t = open(path).read().replace("; @launch kernel=%s_kernel " % NAME, "; @launch ")
    t = t.replace(".text\n", ".text\n.globl %s_kernel\n.type %s_kernel,@function\n" % (NAME, NAME), 1)
    open(path, "w").write(t)
    return path
def fo2(a, C):
    a = a.reshape(128, C // 32, 4, 16, 2, 4)
    return a.transpose(0, 3, 1, 4, 2, 5).reshape(2048, C)
def cmp(n, a, b):
    e = a - b
    print("%s: err max %.4g rms %.4g ref rms %.4g rel %.4g" % (n, np.abs(e).max(), np.sqrt((e ** 2).mean()), np.sqrt((b ** 2).mean()), np.sqrt((e ** 2).mean() / (b ** 2).mean())))
def check(r, z, full=False):
    R = lambda n, C=512: bf16_to_f32(z["t_" + n].reshape(2048, C))
    W = lambda off, C=512: bf16_to_f32(fo2(r.get_ws(off, np.uint16, (2048 * C,)), C))
    cmp("out", r.get_out(), bf16_to_f32(z["ref"].reshape(2048, 512)))
    if not full: return
    cmp("h", bf16_to_f32(r.get_ws(HT, np.uint16, (512, 2048))).T, R("h"))
    h1 = R("h1"); hs = np.zeros_like(h1)
    hs[1:, :128] = h1[:-1, :128]; hs[:-1, 128:256] = h1[1:, 128:256]; hs[2:, 256:384] = h1[:-2, 256:384]; hs[:-2, 384:] = h1[2:, 384:]
    cmp("h1", W(H1), h1); cmp("x1", W(X1), R("x1")); cmp("h3", W(H3, 1792), R("h3", 1792))
    cmp("out", r.get_out(), bf16_to_f32(z["ref"].reshape(2048, 512)))
DET = []
def prof(r, flush=True):
    r.reload()
    r.reset(ws_bytes=WEND); r.sync()
    if flush: r.do_flush()
    r.launch(); r.sync()
    a = r.get_ws(PROF, np.uint32, (256, 8, 16)).astype(np.int64)
    t0 = a[:, :, 0].min()
    if DET:
        for s_ in DET:
            b = (a[:, :4, s_].max(axis=1) if s_ < 100 else a[:, 4, s_ - 100]).reshape(32, 8)
            print("det", s_, " ".join("%.1f" % ((x - t0) / 100) for x in np.median(b, axis=1)))
    for nm, ws in (("C", [0, 1, 2, 3]), ("Bld", [4, 5]), ("Ald", [6, 7])):
        b = a[:, ws].reshape(-1, 16)
        out = []
        for s_ in range(16):
            c = b[:, s_]; c = c[c != 0]
            if len(c): out.append("%d:[%.1f %.1f]" % (s_, (np.median(c) - t0) / 100, (c.max() - t0) / 100))
        print(nm, " ".join(out))
if __name__ == "__main__":
    if len(sys.argv) > 1 and sys.argv[1].endswith(".s"):
        buildf(sys.argv[1]); sys.exit(0)
    z, inputs = load_ref(0)
    opts = eval(sys.argv[1]) if len(sys.argv) > 1 else [{}]
    for opt in opts:
        DET[:] = opt.get('det', [])
        print("=====", opt)
        r = Runner(buildf("f.s", False, opt), inputs)
        r.reset(); r.launch(); r.sync()
        check(r, z, opt.get('full', False))
        if opt.get("rep"):
            gold = None; nbad = 0
            for it in range(opt["rep"]):
                r.reset(ws_bytes=WEND); r.sync()
                if it & 1: r.do_flush()
                r.launch(extra=opt.get("extra", 0), numbering=opt.get("num", 0)); r.sync()
                cur = dict(h=r.get_ws(HT, np.uint16, (512, 2048)).T.copy(), h1=fo2(r.get_ws(H1, np.uint16, (2048 * 512,)), 512), x1=fo2(r.get_ws(X1, np.uint16, (2048 * 512,)), 512),
                           h3=fo2(r.get_ws(H3, np.uint16, (2048 * 1792,)), 1792), out=r.get_out().copy())
                if gold is None: gold = cur; continue
                for k in cur:
                    d = np.argwhere(cur[k] != gold[k])
                    if len(d):
                        nbad += 1
                        print(it, k, len(d), "rows", sorted(set(d[:, 0]))[:12], "cols", d[:, 1].min(), d[:, 1].max())
            print("rep done bad", nbad)
            check(r, z)
        print("time %.1f %.1f" % r.time(30), "reload %.1f %.1f" % r.time(30, reload=True))
        r.k.unload(); del r
        r = Runner(buildf("fp.s", True, opt), inputs)
        for it in range(opt.get('np', 1)): prof(r)
        r.k.unload(); del r
```
